```python
import torch

def _softmax(x, axis=-1):
    return torch.softmax(x, dim=axis)
def _gelu(x):
    return torch.nn.functional.gelu(x, approximate="tanh")
def _silu(x):
    return torch.nn.functional.silu(x)
def _sigmoid(x):
    return torch.sigmoid(x)
def _layernorm(x, axis=-1, eps=1e-5):
    m = x.mean(dim=axis, keepdim=True)
    v = x.var(dim=axis, keepdim=True, unbiased=False)
    return (x - m) / torch.sqrt(v + eps)
def _scatter_add(tgt, idx, src, axis=0):
    return tgt.clone().index_add_(axis, idx, src)
def _segment_sum(src, seg, n):
    out = torch.zeros((n,) + src.shape[1:], dtype=src.dtype)
    return out.index_add_(0, seg, src)
def _pad(x, pw):
    flat = tuple(v for pair in reversed(pw) for v in pair)
    return torch.nn.functional.pad(x, flat)

kernel_name = 'gated_mix__spectral_gfnet__dense_activation_silu__prompt'

def setup_inputs():

    _w = (lambda a: (lambda t: t.to(torch.bfloat16) if t.is_floating_point() else t)(torch.as_tensor(a)))
    def _A_setup():
        B, S, D = 1, 2048, 512
        Df = D // 2 + 1
        return {
            "x": _w((lambda *s: torch.randn(*s, dtype=torch.bfloat16) * 0.05)(B, S, D)),
            "w_r": _w((lambda *s: torch.randn(*s, dtype=torch.bfloat16) * 0.4)(S, Df) * 0.02),
            "w_i": _w((lambda *s: torch.randn(*s, dtype=torch.bfloat16) * 0.4)(S, Df) * 0.02),
        }
    _A_in = _A_setup()

    def _B_setup():
        B, S, D, F = 1, 2048, 512, 1792
        return {
            "x": _w((lambda *s: torch.randn(*s, dtype=torch.bfloat16) * 0.05)(B, S, D)),
            "w1": _w((lambda *s: torch.randn(*s, dtype=torch.bfloat16) * 3.2)(D, F) * (D ** -0.5)),
            "w2": _w((lambda *s: torch.randn(*s, dtype=torch.bfloat16) * 0.05)(F, D) * (F ** -0.5)),
        }
    _B_in = _B_setup()

    return {
        "A_x": _A_in["x"],
        "A_w_r": _A_in["w_r"],
        "A_w_i": _A_in["w_i"],
        "B_x": _B_in["x"],
        "B_w1": _B_in["w1"],
        "B_w2": _B_in["w2"],
        "gate_w": _w((lambda *s: torch.randn(*s, dtype=torch.bfloat16) * 0.05)(512) * 16.0),
    }

def reference(A_x, A_w_r, A_w_i, B_x, B_w1, B_w2, gate_w):
    def _A_ref(x, w_r, w_i):
        B, S, D = x.shape
        X = (lambda x, axes=(-2,-1): torch.fft.rfft2(x.float(), dim=axes))(x, axes=(-2, -1))
        W = w_r + 1j * w_i
        X = X * W
        y = (lambda x, s, axes=(-2,-1): torch.fft.irfft2(x, s=s, dim=axes).to(torch.bfloat16))(X, (S, D), axes=(-2, -1))
        return y

    def _B_ref(x, w1, w2):
        h = torch.einsum("bsd,df->bsf", x, w1)
        h = _silu(h)
        out = torch.einsum("bsf,fd->bsd", h, w2)
        return out

    x = A_x
    g = _sigmoid((x * gate_w).sum(-1, keepdims=True))
    a = _A_ref(x, A_w_r, A_w_i)
    b = _B_ref(x, B_w1, B_w2)
    return g * a + (1 - g) * b
```

```python
import re

TRANS = ("v_exp_f32", "v_log_f32", "v_rcp_f32", "v_rsq_f32", "v_sqrt_f32", "v_sin_f32", "v_cos_f32")

def regs_of(tok):
    tok = tok.strip()
    tok = tok.lstrip("-")
    if tok.startswith("abs(") or tok.startswith("|"):
        tok = tok.replace("abs(", "").replace(")", "").replace("|", "")
    m = re.fullmatch(r"([vsa])(\d+)", tok)
    if m:
        return {(m.group(1), int(m.group(2)))}
    m = re.fullmatch(r"([vsa])\[(\d+):(\d+)\]", tok)
    if m:
        return {(m.group(1), i) for i in range(int(m.group(2)), int(m.group(3)) + 1)}
    if tok in ("vcc", "vcc_lo", "vcc_hi"):
        return {("vcc", 0)}
    if tok in ("exec", "exec_lo", "exec_hi"):
        return {("exec", 0)}
    if tok == "m0":
        return {("m0", 0)}
    return set()

class Ins:
    def __init__(self, text):
        self.text = text
        t = text.split(";")[0].strip()
        self.is_label = t.endswith(":")
        self.is_dir = t.startswith(".") or t == ""
        self.op = t.split()[0] if t else ""
        rest = t[len(self.op):].strip()
        self.ops = [o.strip() for o in rest.split(",")] if rest else []
        self.mods = ""
        if self.ops:
            parts = self.ops[-1].split()
            if parts:
                self.ops[-1] = parts[0]
                self.mods = " ".join(parts[1:])
        op = self.op
        self.mfma = op.startswith("v_mfma")
        self.valu = op.startswith("v_") and not self.mfma
        self.salu = op.startswith("s_") and not op.startswith(("s_load", "s_waitcnt", "s_nop", "s_barrier", "s_memtime", "s_memrealtime", "s_atomic", "s_buffer"))
        self.vmem = op.startswith(("buffer_", "global_", "flat_"))
        self.ds = op.startswith("ds_")
        self.trans = op.replace("_e32", "").replace("_e64", "") in TRANS
        self.defs, self.uses = set(), set()
        self.srcA = self.srcB = self.srcC = set()
        self.store_data = set()
        if self.is_label or self.is_dir:
            return
        R = [regs_of(o) for o in self.ops]
        if self.mfma:
            self.defs = R[0]; self.srcA, self.srcB, self.srcC = R[1], R[2], R[3]
            self.uses = R[1] | R[2] | R[3]
            self.passes = 8 if "32x32x16" in op else 4
        elif self.valu:
            self.defs = set(R[0])
            srcs = R[1:]
            if op.startswith(("v_add_co", "v_sub_co", "v_addc_co", "v_subb_co", "v_subrev_co")):
                self.defs |= R[1]; srcs = R[2:]
            for r in srcs: self.uses |= r
            if op.startswith(("v_fmac", "v_dot2c", "v_pk_fmac")) or "dpp" in self.mods or "row_" in self.mods or "quad_perm" in self.mods:
                self.uses |= R[0]
            if op.startswith("v_permlane"):
                self.defs |= R[1]; self.uses |= R[0]
            if op.startswith("v_cmpx"):
                self.defs |= {("exec", 0)}
            if op.startswith("v_cndmask") and len(self.ops) == 3:
                self.uses |= {("vcc", 0)}
        elif self.vmem:
            is_lds = " lds" in (" " + self.mods) or "load_lds" in op
            self.is_lds = is_lds
            if "load" in op and not is_lds:
                self.defs = set(R[0])
                for r in R[1:]: self.uses |= r
                if "d16" in op: self.uses |= R[0]
            else:
                for r in R: self.uses |= r
                if "store" in op or "atomic" in op:
                    dr = R[0] if op.startswith("buffer_") else R[1]
                    if op.endswith(("x3", "x4")): self.store_data = set(dr)
                    if "atomic" in op and "sc0" in self.mods:
                        self.defs = set(R[0])
            if is_lds: self.uses |= {("m0", 0)}
        elif self.ds:
            if op.startswith(("ds_read", "ds_bpermute", "ds_permute", "ds_swizzle")) or "_rtn" in op:
                self.defs = set(R[0])
                for r in R[1:]: self.uses |= r
            else:
                for r in R: self.uses |= r
        elif op.startswith("s_"):
            if op.startswith(("s_cmp", "s_cbranch", "s_branch", "s_waitcnt", "s_nop", "s_barrier", "s_endpgm", "s_setprio", "s_sleep")):
                for r in R: self.uses |= r
            else:
                if R: self.defs = set(R[0])
                for r in R[1:]: self.uses |= r
                if "saveexec" in op: self.defs |= {("exec", 0)}
    def states(self):
        if self.is_label or self.is_dir: return 0
        if self.op == "s_nop": return int(self.ops[0], 0) + 1
        return 1

def isv(s): return {r for r in s if r[0] in ("v", "a")}
def iss(s): return {r for r in s if r[0] in ("s", "vcc")}

def need(p, c):
    n = 0
    if p.valu:
        dv, dsr = isv(p.defs), iss(p.defs)
        if c.mfma and dv & c.uses: n = max(n, 2)
        if c.valu and p.trans and not c.trans and dv & c.uses: n = max(n, 1)
        if c.valu and c.op.startswith(("v_readfirstlane", "v_readlane")) and dv & c.uses: n = max(n, 1)
        if c.valu and c.op.startswith("v_permlane") and dv & c.uses: n = max(n, 2)
        if c.valu and ("row_" in c.mods or "quad_perm" in c.mods or "dpp" in c.mods) and dv & c.uses: n = max(n, 2)
        if dsr:
            if c.vmem and dsr & c.uses: n = max(n, 5)
            if c.valu and dsr & c.uses: n = max(n, 4 if c.op.startswith(("v_readlane", "v_writelane")) else 2)
            if c.salu and dsr & c.uses: n = max(n, 1)
        if ("exec", 0) in p.defs:
            if c.mfma: n = max(n, 4)
            if c.valu and c.op.startswith(("v_readfirstlane", "v_readlane", "v_permlane")): n = max(n, 4)
            if c.valu and ("row_" in c.mods or "quad_perm" in c.mods): n = max(n, 5)
        if "op_sel" in p.mods or "sdwa" in p.op or "dst_sel" in p.mods:
            if c.valu and dv & (c.uses | c.defs): n = max(n, 1)
        if p.op.startswith("v_dot"):
            if (c.valu or c.vmem or c.ds or c.mfma) and dv & (c.uses | c.defs):
                same = c.op == p.op
                if same:
                    ab = set()
                    for o in c.ops[1:3]: ab |= regs_of(o)
                    if dv & ab: n = max(n, 3)
                else:
                    n = max(n, 3)
    if p.mfma:
        big = 12 if p.passes == 8 else 8
        ov = 10 if p.passes == 8 else 6
        war = 7 if p.passes == 8 else 3
        if c.mfma:
            if p.defs & (c.srcA | c.srcB): n = max(n, big)
            if p.defs & c.srcC:
                if not (p.defs == c.srcC and p.passes == c.passes): n = max(n, ov)
            elif p.defs & c.defs:
                n = max(n, ov)
        elif c.valu or c.vmem or c.ds:
            if p.defs & (c.uses | c.defs): n = max(n, big)
            if c.valu and p.srcC & c.defs: n = max(n, war)
    if p.salu and ("m0", 0) in p.defs and c.vmem and getattr(c, "is_lds", False): n = max(n, 1)
    if p.salu and ("exec", 0) in p.defs and c.valu and ("row_" in c.mods or "quad_perm" in c.mods): n = max(n, 1)
    if p.vmem and p.store_data and (c.valu or c.mfma or c.ds or c.vmem) and p.store_data & c.defs: n = max(n, 2)
    return n

def pad(lines, report=None):
    out = []
    for text in lines:
        c = Ins(text)
        if not (c.is_label or c.is_dir):
            dist, req = 0, 0
            for p in reversed(out):
                if dist >= 12: break
                if not (p.is_label or p.is_dir):
                    r = need(p, c) - dist
                    if r > req: req = r
                dist += p.states()
            if req > 0:
                out.append(Ins(f"s_nop {req - 1}"))
                if report is not None: report.append((req, text))
        out.append(c)
    return [i.text for i in out]

class Regs:
    def __init__(self, kind, lo, hi):
        self.kind, self.free = kind, [True] * hi
        for i in range(lo): self.free[i] = False
        self.hi = hi; self.peak = lo
    def alloc(self, n=1, align=None):
        if align is None: align = 1 if n == 1 else (2 if n == 2 else 4)
        i = 0
        while i + n <= self.hi:
            if i % align == 0 and all(self.free[i:i + n]):
                for j in range(i, i + n): self.free[j] = False
                self.peak = max(self.peak, i + n)
                return i
            i += 1
        raise RuntimeError(f"out of {self.kind} registers (need {n})")
    def release(self, base, n=1):
        for j in range(base, base + n):
            assert not self.free[j], f"double free {j}"
            self.free[j] = True

def v(i, n=1): return f"v{i}" if n == 1 else f"v[{i}:{i + n - 1}]"
def s(i, n=1): return f"s{i}" if n == 1 else f"s[{i}:{i + n - 1}]"
```

```python
import sys
from asmlib import *

NAME = "gated_mix__spectral_gfnet__dense_activation_silu__prompt"
H_OFF, T_OFF, TI_OFF = 0, 0x700000, 0x900000
T256_OFF, TI256_OFF, G_OFF, WS_SIZE = 0xB00000, 0xB02000, 0xB04000, 0xB06000
sX, sW1, sWS, sGW, sWR, sWI, sW2, sOUT = 28, 32, 36, 40, 44, 48, 52, 56
PTR = dict(x=8, wr=10, wi=12, w1=16, w2=18, gw=20, out=22, dbg=24, ws=26)
SIZES = dict(x=2048*512*2, wr=2048*257*2, wi=2048*257*2, w1=512*1792*2, w2=1792*512*2, gw=1024, out=2048*512*2, ws=WS_SIZE)
MF = "v_mfma_f32_16x16x32_bf16"

def f2u(x):
    import struct
    return struct.unpack("<I", struct.pack("<f", x))[0]
def flit(x): return hex(f2u(x))

class K:
    def __init__(self): self.L = []
    def __call__(self, t): self.L.append("  " + t)
    def label(self, t): self.L.append(t + ":")
    def srd(self, dst, name):
        p = PTR[name]
        self(f"s_mov_b32 {s(dst)}, {s(p)}")
        self(f"s_mov_b32 {s(dst+1)}, {s(p+1)}")
        self(f"s_mov_b32 {s(dst+2)}, {hex(SIZES[name])}")
        self(f"s_mov_b32 {s(dst+3)}, 0x20000")
    def mfma(self, d, a, b, c=None):
        self(f"{MF} {v(d,4)}, {v(a,4)}, {v(b,4)}, {v(c,4) if c is not None else 0}")
    def sincos4(self, dc, ds_, ph, st, t, phs=None, sts=None, scale0=None):
        if phs is None: phs, sts = ph, st
        for pr in range(2):
            for e in range(2):
                self(f"v_cos_f32 {v(t+e)}, {v(ph)}")
                self(f"v_sin_f32 {v(t+2+e)}, {v(phs)}")
                self(f"v_add_f32 {v(ph)}, {v(ph)}, {v(st)}")
                if phs != ph: self(f"v_add_f32 {v(phs)}, {v(phs)}, {v(sts)}")
                if scale0 is not None and pr == 0 and e == 0:
                    self(f"v_mul_f32 {v(t)}, {v(t)}, {v(scale0)}")
            self(f"v_cvt_pk_bf16_f32 {v(dc+pr)}, {v(t)}, {v(t+1)}")
            self(f"v_cvt_pk_bf16_f32 {v(ds_+pr)}, {v(t+2)}, {v(t+3)}")

def prologue(k, name, nwg, endlabel):
    k.L.append(f".globl {name}\n.p2align 8\n.type {name},@function")
    k.label(name)
    k(f"s_cmp_ge_u32 s2, {nwg}")
    k(f"s_cbranch_scc1 {endlabel}")
    k("s_load_dwordx16 s[8:23], s[0:1], 0")
    k("s_load_dwordx4 s[24:27], s[0:1], 64")
    k("v_lshrrev_b32 v1, 6, v0")
    k("v_and_b32 v0, 63, v0")
    k("v_readfirstlane_b32 s60, v1")
    k("v_and_b32 v1, 15, v0")
    k("v_lshrrev_b32 v2, 4, v0")
    k("s_and_b32 s61, s2, 7")
    k("s_lshr_b32 s62, s2, 3")

vL, vN, vQ = 0, 1, 2
sWAVE, sXCD, sIDX = 60, 61, 62

W1_LDS, FT_LDS = 0, 114688
def kernel1(k):
    prologue(k, "k1_kernel", 256, "k1_end")
    sMT, sNT, sS0 = 63, 64, 65
    k(f"s_lshr_b32 s3, {s(sIDX)}, 4")
    k(f"s_lshl_b32 {s(sMT)}, {s(sXCD)}, 1")
    k(f"s_add_u32 {s(sMT)}, {s(sMT)}, s3")
    k(f"s_and_b32 {s(sNT)}, {s(sIDX)}, 15")
    k(f"s_cmp_ge_u32 {s(sWAVE)}, 4")
    k("s_cbranch_scc1 k1_F")
    R = Regs("v", 3, 256)
    t = R.alloc(8, 4)
    vXo = R.alloc()
    X = R.alloc(128, 4)
    xf = lambda rt, ks: X + (rt * 16 + ks) * 4
    k(f"s_lshl_b32 {s(sS0)}, {s(sMT)}, 2")
    k(f"s_add_u32 {s(sS0)}, {s(sS0)}, {s(sWAVE)}")
    k(f"v_lshlrev_b32 {v(vXo)}, 16, {v(vN)}")
    k(f"v_lshl_add_u32 {v(vXo)}, {v(vQ)}, 4, {v(vXo)}")
    k(f"s_lshl_b32 s66, {s(sS0)}, 10")
    k(f"s_add_u32 s67, s66, 0x100000")
    k("s_waitcnt lgkmcnt(0)")
    k.srd(sX, "x")
    for j in range(4):
        for ks in (2*j, 2*j+1, 2*j+8, 2*j+9):
            for rt in range(2):
                k(f"buffer_load_dwordx4 {v(xf(rt,ks),4)}, {v(vXo)}, {s(sX,4)}, {s(66+rt)} offen offset:{ks*64}")
    k.srd(sWS, "ws")
    E = R.alloc(16, 4)
    ph, st, base = R.alloc(), R.alloc(), R.alloc()
    k(f"v_lshlrev_b32 {v(base)}, 8, {v(vQ)}")
    k(f"v_add_u32 {v(base)}, {s(sS0)}, {v(base)}")
    k(f"v_cvt_f32_u32 {v(base)}, {v(base)}")
    k(f"v_mul_f32 {v(base)}, {flit(1/64)}, {v(base)}")
    for tt in range(2):
        k(f"v_add_u32 {v(st)}, {16*tt}, {v(vN)}")
        k(f"v_cvt_f32_u32 {v(st)}, {v(st)}")
        k(f"v_mul_f32 {v(st)}, {flit(-1/32)}, {v(st)}")
        k(f"v_mul_f32 {v(ph)}, {v(base)}, {v(st)}")
        k.sincos4(E + tt*8, E + tt*8 + 4, ph, st, t)
        k(f"v_fmamk_f32 {v(ph)}, {v(st)}, {flit(12.0)}, {v(ph)}")
        k.sincos4(E + tt*8 + 2, E + tt*8 + 6, ph, st, t)
    R.release(ph); R.release(st); R.release(base)
    k(f"s_lshl_b32 s68, {s(sNT)}, 31")
    k(f"s_or_b32 s68, s68, 0x3f800000")
    vMu = R.alloc()
    k(f"v_or_b32 {v(vMu)}, {s(sNT)}, {v(vQ)}")
    k(f"v_cmp_ne_u32 vcc, 0, {v(vMu)}")
    k(f"v_cndmask_b32 {v(vMu)}, 0, 1.0, vcc")
    vFa = R.alloc()
    k(f"v_lshlrev_b32 {v(vFa)}, 4, {v(vL)}")
    k(f"v_add_u32 {v(vFa)}, {FT_LDS}, {v(vFa)}")
    FF = R.alloc(64, 4)
    accY = R.alloc(32, 4)
    ay = lambda half, rt, ri: accY + ((half * 2 + rt) * 2 + ri) * 4
    k("s_barrier")
    for ks in range(8):
        for ri in range(2):
            k(f"ds_read_b128 {v(FF + (ks*2+ri)*4, 4)}, {v(vFa)} offset:{(ks*2+ri)*1024}")
    for j in range(4):
        k(f"s_waitcnt vmcnt({24 - 8*j}) lgkmcnt({12 - 4*j})")
        for ks in (2*j, 2*j+1):
            for half in range(2):
                for rt in range(2):
                    for ri in range(2):
                        k.mfma(ay(half, rt, ri), xf(rt, ks + 8*half), FF + (ks*2+ri)*4, ay(half, rt, ri) if ks else None)
    vA0, vA1, vB0, vB1 = R.alloc(), R.alloc(), t + 6, t + 7
    k(f"v_lshrrev_b32 {v(t)}, 1, {v(vQ)}")
    k(f"v_lshlrev_b32 {v(t)}, 4, {v(t)}")
    k(f"v_and_b32 {v(t+1)}, 1, {v(vQ)}")
    k(f"v_lshl_add_u32 {v(t)}, {v(t+1)}, 2, {v(t)}")
    k(f"v_lshrrev_b32 {v(t+1)}, 2, {v(vN)}")
    k(f"v_add_u32 {v(t)}, {v(t)}, {v(t+1)}")
    k(f"v_mul_u32_u24 {v(t)}, 224, {v(t)}")
    k(f"v_and_b32 {v(t+1)}, 3, {v(vN)}")
    k(f"v_lshl_add_u32 {v(t)}, {v(t+1)}, 3, {v(t)}")
    k(f"s_and_b32 s3, {s(sNT)}, 1")
    k(f"s_lshl_b32 s69, s3, 5")
    k(f"s_mul_i32 s70, s3, 192")
    k(f"s_sub_u32 s70, 192, s70")
    k(f"v_add_u32 {v(vA0)}, s69, {v(t)}")
    k(f"v_add_u32 {v(vB0)}, s70, {v(t)}")
    k(f"v_add_u32 {v(vA1)}, {256*224}, {v(vA0)}")
    k(f"v_add_u32 {v(vB1)}, {256*224}, {v(vB0)}")
    Yf = FF + 32
    for rt in range(2):
        for ri in range(2):
            for r in range(4):
                k(f"v_fma_f32 {v(ay(0,rt,ri)+r)}, s68, {v(ay(1,rt,ri)+r)}, {v(ay(0,rt,ri)+r)}")
            for pr in range(2):
                k(f"v_cvt_pk_bf16_f32 {v(Yf + ri*4 + rt*2 + pr)}, {v(ay(0,rt,ri)+2*pr)}, {v(ay(0,rt,ri)+2*pr+1)}")
    P = FF
    for tt in range(2):
        k.mfma(P + tt*16 + 0, Yf + 0, E + tt*8 + 0)
        k.mfma(P + tt*16 + 4, Yf + 4, E + tt*8 + 4)
        k.mfma(P + tt*16 + 8, Yf + 0, E + tt*8 + 4)
        k.mfma(P + tt*16 + 12, Yf + 4, E + tt*8 + 0)
    vTo = vFa
    k(f"v_lshlrev_b32 {v(vTo)}, 16, {v(vN)}")
    k(f"v_lshl_add_u32 {v(vTo)}, {v(vQ)}, 4, {v(vTo)}")
    k(f"s_lshl_b32 s71, {s(sNT)}, 6")
    k(f"s_add_u32 s71, s71, {s(sS0)}")
    k(f"s_lshl_b32 s71, s71, 6")
    k(f"s_add_u32 s71, s71, {hex(T_OFF)}")
    k(f"s_add_u32 s72, s71, 0x100000")
    TO = accY
    for tt in range(2):
        p = P + tt*16
        for r in range(4):
            if r == 0:
                k(f"v_fma_f32 {v(p)}, -{v(vMu)}, {v(p+4)}, {v(p)}")
                k(f"v_fma_f32 {v(p+8)}, {v(vMu)}, {v(p+12)}, {v(p+8)}")
            else:
                k(f"v_sub_f32 {v(p+r)}, {v(p+r)}, {v(p+4+r)}")
                k(f"v_add_f32 {v(p+8+r)}, {v(p+8+r)}, {v(p+12+r)}")
        k(f"v_cvt_pk_bf16_f32 {v(TO+tt*4+0)}, {v(p+0)}, {v(p+1)}")
        k(f"v_cvt_pk_bf16_f32 {v(TO+tt*4+1)}, {v(p+2)}, {v(p+3)}")
        k(f"v_cvt_pk_bf16_f32 {v(TO+tt*4+2)}, {v(p+8)}, {v(p+9)}")
        k(f"v_cvt_pk_bf16_f32 {v(TO+tt*4+3)}, {v(p+10)}, {v(p+11)}")
        k(f"buffer_store_dwordx4 {v(TO+tt*4,4)}, {v(vTo)}, {s(sWS,4)}, {s(71+tt)} offen")
    k(f"s_cmp_lg_u32 {s(sNT)}, 0")
    k("s_cbranch_scc1 k1_no256")
    k(f"v_lshrrev_b32 {v(t)}, 2, {v(vN)}")
    k(f"v_lshlrev_b32 {v(t)}, 4, {v(t)}")
    k(f"v_and_b32 {v(t+1)}, 3, {v(vN)}")
    k(f"v_lshl_add_u32 {v(t)}, {v(t+1)}, 1, {v(t)}")
    k(f"s_lshl_b32 s71, {s(sS0)}, 6")
    k(f"s_add_u32 s71, s71, {hex(T256_OFF)}")
    k(f"s_add_u32 s72, s71, 4096")
    k(f"v_cvt_pk_bf16_f32 {v(t+2)}, {v(P+12)}, {v(P+4)}")
    k(f"v_cvt_pk_bf16_f32 {v(t+3)}, {v(P+16+12)}, {v(P+16+4)}")
    k("s_mov_b64 exec, 0xffff")
    for tt in range(2):
        k(f"buffer_store_short {v(t+2+tt)}, {v(t)}, {s(sWS,4)}, {s(71+tt)} offen")
        k(f"buffer_store_short_d16_hi {v(t+2+tt)}, {v(t)}, {s(sWS,4)}, {s(71+tt)} offen offset:8")
    k("s_mov_b64 exec, -1")
    k.label("k1_no256")
    k("s_nop 1")
    acc = FF
    BF = accY - 0 + 8 if False else None
    R.release(E, 16)
    bf_ = lambda tl: (accY + 8 + tl*4) if tl < 6 else FF + 56
    ac = lambda tl, rt: acc + (tl*2 + rt) * 4
    def rd(ks, tl):
        a = (vA0, vA1)[ks >= 8] if tl < 6 else (vB0, vB1)[ks >= 8]
        for u in range(2):
            off = W1_LDS + (32 * (ks % 8) + 8*u) * 224 + (tl*32 if tl < 6 else 0)
            k(f"ds_read_b64_tr_b16 {v(bf_(tl)+2*u,2)}, {v(a)} offset:{off}")
    k("s_barrier")
    for tl in range(7): rd(0, tl)
    for ks in range(16):
        if ks % 4 == 3 and ks < 15: k("s_barrier")
        for tl in range(7):
            k(f"s_waitcnt lgkmcnt({12 if ks < 15 else 12 - 2*tl})")
            for rt in range(2):
                k.mfma(ac(tl, rt), bf_(tl), xf(rt, ks), ac(tl, rt) if ks else None)
            if ks < 15: rd(ks + 1, tl)
    k(f"s_lshr_b32 s71, {s(sS0)}, 1")
    k(f"s_mul_i32 s71, s71, 56")
    k(f"s_lshr_b32 s72, {s(sNT)}, 1")
    k(f"s_mul_i32 s72, s72, 7")
    k(f"s_add_u32 s71, s71, s72")
    k(f"s_lshl_b32 s71, s71, 12")
    k(f"s_and_b32 s72, {s(sS0)}, 1")
    k(f"s_lshl_b32 s72, s72, 11")
    k(f"s_add_u32 s71, s71, s72")
    k(f"s_and_b32 s3, {s(sNT)}, 1")
    k(f"s_lshl_b32 s72, s3, 3")
    k(f"s_add_u32 s75, s71, s72")
    k(f"s_add_u32 s75, s75, {3*4096}")
    k(f"s_lshl_b32 s72, s3, 14")
    k(f"s_add_u32 s72, s71, s72")
    k(f"s_add_u32 s73, s72, 4096")
    k(f"s_add_u32 s74, s72, 8192")
    vH = vFa
    k(f"v_lshlrev_b32 {v(vH)}, 4, {v(vL)}")
    k(f"s_mov_b32 s76, {flit(-1.4426950408889634)}")
    HO = X
    def silu4(a, tmp):
        for r in range(4): k(f"v_mul_f32 {v(tmp+r)}, s76, {v(a+r)}")
        for r in range(4): k(f"v_exp_f32 {v(tmp+r)}, {v(tmp+r)}")
        for r in range(4): k(f"v_add_f32 {v(tmp+r)}, 1.0, {v(tmp+r)}")
        for r in range(4): k(f"v_rcp_f32 {v(tmp+r)}, {v(tmp+r)}")
        for r in range(4): k(f"v_mul_f32 {v(tmp+r)}, {v(tmp+r)}, {v(a+r)}")
    o = 0
    for pj in range(4):
        for rt in range(2):
            dst = HO + 8 + o; o += 4
            for h in range(2 if pj < 3 else 1):
                silu4(ac(2*pj + h, rt), HO + 4*h)
                k(f"v_cvt_pk_bf16_f32 {v(dst+2*h)}, {v(HO+4*h)}, {v(HO+4*h+1)}")
                k(f"v_cvt_pk_bf16_f32 {v(dst+2*h+1)}, {v(HO+4*h+2)}, {v(HO+4*h+3)}")
            if pj < 3:
                k(f"buffer_store_dwordx4 {v(dst,4)}, {v(vH)}, {s(sWS,4)}, {s(72+pj)} offen offset:{rt*1024}")
            else:
                k(f"buffer_store_dwordx2 {v(dst,2)}, {v(vH)}, {s(sWS,4)}, {s(75)} offen offset:{rt*1024}")
    k("s_endpgm")
    k.label("k1_F")
    R = Regs("v", 3, 256)
    t = R.alloc(8, 4)
    sF = 65
    k(f"s_sub_u32 {s(sF)}, {s(sWAVE)}, 4")
    vGx, vGw, vD = R.alloc(), R.alloc(), R.alloc()
    GX, GW = R.alloc(8, 4), R.alloc(8, 4)
    k(f"v_lshlrev_b32 {v(vGx)}, 5, {v(vL)}")
    k(f"v_and_b32 {v(vGw)}, 0x3ff, {v(vGx)}")
    k(f"s_lshl_b32 s66, s2, 2")
    k(f"s_add_u32 s66, s66, {s(sF)}")
    k(f"s_lshl_b32 s66, s66, 1")
    k(f"s_lshl_b32 s67, s66, 10")
    k(f"v_mul_u32_u24 {v(t)}, 4682, {v(vL)}")
    k(f"v_lshrrev_b32 {v(t)}, 16, {v(t)}")
    k(f"v_mul_u32_u24 {v(t+1)}, {3584 - 224}, {v(t)}")
    k(f"v_lshl_add_u32 {v(vD)}, {v(vL)}, 4, {v(t+1)}")
    k(f"s_mul_i32 s68, {s(sF)}, {32*3584}")
    k(f"s_mul_i32 s3, {s(sNT)}, 224")
    k(f"s_add_u32 s68, s68, s3")
    k(f"s_mul_i32 s69, {s(sF)}, {32*224}")
    k("s_waitcnt lgkmcnt(0)")
    k.srd(sX, "x"); k.srd(sGW, "gw"); k.srd(sW1, "w1")
    for j in range(2):
        k(f"buffer_load_dwordx4 {v(GX+4*j,4)}, {v(vGx)}, {s(sX,4)}, s67 offen offset:{16*j}")
        k(f"buffer_load_dwordx4 {v(GW+4*j,4)}, {v(vGw)}, {s(sGW,4)}, 0 offen offset:{16*j}")
    k("s_mov_b32 exec_hi, 0xffffff")
    for c in range(4):
        for i in range(8):
            k0 = ((i & 1) << 3) | ((i & 2) << 1) | ((i & 4) << 2)
            k(f"s_add_u32 m0, s69, {W1_LDS + (128*c + 4*i) * 224}")
            k(f"s_add_u32 s70, s68, {(128*c + k0) * 3584}")
            k(f"buffer_load_dwordx4 {v(vD)}, {s(sW1,4)}, s70 offen lds")
    k("s_mov_b32 exec_hi, -1")
    k.srd(sWS, "ws")
    ph, st, phs, sts, dd = R.alloc(), R.alloc(), R.alloc(), R.alloc(), R.alloc()
    FO = R.alloc(8, 4)
    k(f"s_lshr_b32 s70, {s(sNT)}, 1")
    k(f"s_lshl_b32 s70, s70, 5")
    k(f"s_and_b32 s3, {s(sNT)}, 1")
    k(f"s_add_u32 s70, s70, s3")
    k(f"v_lshl_add_u32 {v(st)}, {v(vN)}, 1, s70")
    k(f"v_cmp_eq_u32 vcc, 0, {v(st)}")
    k(f"v_cvt_f32_u32 {v(st)}, {v(st)}")
    k(f"v_mul_f32 {v(st)}, {flit(-1/512)}, {v(st)}")
    k(f"v_cndmask_b32 {v(sts)}, {v(st)}, 0.5, vcc")
    k(f"v_mov_b32 {v(t)}, {flit(0.25)}")
    k(f"v_cndmask_b32 {v(t+4)}, 0, {v(t)}, vcc")
    k(f"s_lshl_b32 s70, {s(sF)}, 6")
    k(f"v_lshl_add_u32 {v(dd)}, {v(vQ)}, 3, s70")
    k(f"v_cvt_f32_u32 {v(dd)}, {v(dd)}")
    k(f"v_mul_f32 {v(ph)}, {v(dd)}, {v(st)}")
    k(f"v_fma_f32 {v(phs)}, {v(dd)}, {v(sts)}, {v(t+4)}")
    k(f"s_lshl_b32 s70, {s(sF)}, 12")
    k(f"s_add_u32 s70, s70, {FT_LDS}")
    k(f"v_lshl_add_u32 {v(dd)}, {v(vL)}, 4, s70")
    for j in range(2):
        k.sincos4(FO, FO + 4, ph, st, t, phs, sts)
        k.sincos4(FO + 2, FO + 6, ph, st, t, phs, sts)
        k(f"ds_write_b128 {v(dd)}, {v(FO,4)} offset:{j*2048}")
        k(f"ds_write_b128 {v(dd)}, {v(FO+4,4)} offset:{j*2048+1024}")
        if j == 0:
            k(f"v_fmamk_f32 {v(ph)}, {v(st)}, {flit(24.0)}, {v(ph)}")
            k(f"v_fmamk_f32 {v(phs)}, {v(sts)}, {flit(24.0)}, {v(phs)}")
            k("s_waitcnt lgkmcnt(0)")
    k("s_waitcnt lgkmcnt(0)")
    k("s_barrier")
    k("s_waitcnt vmcnt(32)")
    k(f"v_mov_b32 {v(t)}, 0")
    for j in range(8):
        k(f"v_dot2_f32_bf16 {v(t)}, {v(GX+j)}, {v(GW+j)}, {v(t)}")
    for off in (0x041F, 0x081F, 0x101F, 0x201F, 0x401F):
        k(f"ds_swizzle_b32 {v(t+1)}, {v(t)} offset:{hex(off)}")
        k("s_waitcnt lgkmcnt(0)")
        k(f"v_add_f32 {v(t)}, {v(t)}, {v(t+1)}")
    k(f"v_cvt_pk_bf16_f32 {v(t)}, {v(t)}, {v(t)}")
    k(f"v_lshlrev_b32 {v(t)}, 16, {v(t)}")
    k(f"v_mul_f32 {v(t)}, {flit(-1.4426950408889634)}, {v(t)}")
    k(f"v_exp_f32 {v(t)}, {v(t)}")
    k(f"v_add_f32 {v(t)}, 1.0, {v(t)}")
    k(f"v_rcp_f32 {v(t)}, {v(t)}")
    k(f"v_cvt_pk_bf16_f32 {v(t)}, {v(t)}, {v(t)}")
    k(f"v_lshlrev_b32 {v(t)}, 16, {v(t)}")
    k(f"v_lshrrev_b32 {v(t+1)}, 5, {v(vL)}")
    k(f"v_add_u32 {v(t+1)}, s66, {v(t+1)}")
    k(f"v_and_b32 {v(t+2)}, 63, {v(t+1)}")
    k(f"v_lshrrev_b32 {v(t+1)}, 6, {v(t+1)}")
    k(f"v_lshl_add_u32 {v(t+1)}, {v(t+2)}, 5, {v(t+1)}")
    k(f"v_lshlrev_b32 {v(t+1)}, 2, {v(t+1)}")
    k(f"s_mov_b32 s70, {hex(G_OFF)}")
    k("s_mov_b32 exec_lo, 1")
    k("s_mov_b32 exec_hi, 1")
    k(f"buffer_store_dword {v(t)}, {v(t+1)}, {s(sWS,4)}, s70 offen")
    for c in range(4):
        k(f"s_waitcnt vmcnt({8*(3-c)+1})")
        k("s_barrier")
    k.label("k1_end")
    k("s_endpgm")

def gen_omega64(k, O, R, t):
    ph, st, base = R.alloc(), R.alloc(), R.alloc()
    k(f"v_lshlrev_b32 {v(base)}, 2, {v(vQ)}")
    k(f"v_cvt_f32_u32 {v(base)}, {v(base)}")
    for tt in range(4):
        k(f"v_add_u32 {v(st)}, {16*tt}, {v(vN)}")
        k(f"v_cvt_f32_u32 {v(st)}, {v(st)}")
        k(f"v_mul_f32 {v(st)}, {flit(-1/64)}, {v(st)}")
        k(f"v_mul_f32 {v(ph)}, {v(base)}, {v(st)}")
        for u in range(2):
            for h in range(2):
                o = O + (tt*2 + u) * 8
                k.sincos4(o + 2*h, o + 4 + 2*h, ph, st, t)
                if not (u == 1 and h == 1):
                    k(f"v_fmamk_f32 {v(ph)}, {v(st)}, {flit(12.0)}, {v(ph)}")
    R.release(ph); R.release(st); R.release(base)

def kernel2(k):
    prologue(k, "k2_kernel", 256, "k2_end")
    R = Regs("v", 3, 256)
    t = R.alloc(8, 4)
    vW, vS, vD = R.alloc(), R.alloc(), R.alloc()
    sBLK, sSTB, sSTT = 66, 67, 68
    k(f"s_cmp_ge_u32 {s(sWAVE)}, 2")
    k("s_cbranch_scc1 k2_special")
    k(f"s_lshl_b32 s63, {s(sXCD)}, 1")
    k(f"s_add_u32 s63, s63, {s(sWAVE)}")
    k(f"s_lshl_b32 {s(sBLK)}, {s(sIDX)}, 4")
    k(f"s_add_u32 {s(sBLK)}, {s(sBLK)}, s63")
    k(f"s_lshl_b32 {s(sSTB)}, {s(sBLK)}, 6")
    k(f"s_add_u32 {s(sSTB)}, {s(sSTB)}, {hex(TI_OFF)}")
    k(f"s_lshl_b32 {s(sBLK)}, {s(sBLK)}, 12")
    k(f"s_add_u32 {s(sBLK)}, {s(sBLK)}, {hex(T_OFF)}")
    k(f"s_mov_b32 {s(sSTT)}, {16*32768}")
    k(f"v_lshlrev_b32 {v(vS)}, 15, {v(vN)}")
    k(f"s_mul_i32 s64, {s(sIDX)}, 514")
    k(f"s_lshl_b32 s3, {s(sXCD)}, 6")
    k(f"s_add_u32 s64, s64, s3")
    k(f"s_lshl_b32 s3, {s(sWAVE)}, 1")
    k(f"s_add_u32 s64, s64, s3")
    k(f"v_lshl_add_u32 {v(vW)}, {v(vN)}, 2, s64")
    k("s_branch k2_common")
    k.label("k2_special")
    k(f"s_cmp_ge_u32 {s(sWAVE)}, 3")
    k("s_cbranch_scc1 k2_end")
    k(f"s_cmp_ge_u32 s2, 2")
    k("s_cbranch_scc1 k2_end")
    k(f"s_lshl_b32 {s(sBLK)}, s2, 12")
    k(f"s_add_u32 {s(sBLK)}, {s(sBLK)}, {hex(T256_OFF)}")
    k(f"s_lshl_b32 {s(sSTB)}, s2, 6")
    k(f"s_add_u32 {s(sSTB)}, {s(sSTB)}, {hex(TI256_OFF)}")
    k(f"s_mov_b32 {s(sSTT)}, {16*128}")
    k(f"v_lshlrev_b32 {v(vS)}, 7, {v(vN)}")
    k(f"s_mul_i32 s64, s2, {16*514}")
    k(f"s_add_u32 s64, s64, 512")
    k(f"v_mul_u32_u24 {v(vW)}, 514, {v(vN)}")
    k(f"v_add_u32 {v(vW)}, s64, {v(vW)}")
    k.label("k2_common")
    k(f"v_lshl_add_u32 {v(vS)}, {v(vQ)}, 4, {v(vS)}")
    k(f"v_mul_u32_u24 {v(t)}, {128*514}, {v(vQ)}")
    k(f"v_add_u32 {v(vW)}, {v(vW)}, {v(t)}")
    k(f"v_lshlrev_b32 {v(vD)}, 4, {v(vL)}")
    WR, WI = R.alloc(16, 4), R.alloc(16, 4)
    for i in range(16):
        k(f"v_mov_b32 {v(WR+i)}, 0")
        k(f"v_mov_b32 {v(WI+i)}, 0")
    k(f"s_lshl_b32 s65, {s(sWAVE)}, 12")
    k("s_waitcnt lgkmcnt(0)")
    k.srd(sWS, "ws"); k.srd(sWR, "wr"); k.srd(sWI, "wi")
    k(f"s_mov_b32 m0, s65")
    for j in range(4):
        k(f"buffer_load_dwordx4 {v(vD)}, {s(sWS,4)}, {s(sBLK)} offen offset:{1024*j} lds")
    for tt in range(4):
        for r in range(4):
            k(f"s_mov_b32 s3, {(512*tt + 32*r) * 514}")
            k(f"buffer_load_short_d16_hi {v(WR+tt*4+r)}, {v(vW)}, {s(sWR,4)}, s3 offen")
            k(f"buffer_load_short_d16_hi {v(WI+tt*4+r)}, {v(vW)}, {s(sWI,4)}, s3 offen")
    O = R.alloc(64, 4)
    gen_omega64(k, O, R, t)
    oc = lambda tt, u: O + (tt*2+u)*8
    os_ = lambda tt, u: O + (tt*2+u)*8 + 4
    vT = R.alloc()
    k(f"v_lshlrev_b32 {v(vT)}, 4, {v(vL)}")
    k(f"v_add_u32 {v(vT)}, s65, {v(vT)}")
    TF = R.alloc(24, 4)
    k("s_waitcnt vmcnt(32)")
    for u in range(2):
        for ri in range(2):
            for h in range(2):
                k(f"ds_read_b64_tr_b16 {v(TF + (ri*2+u)*4 + 2*h, 2)}, {v(vT)} offset:{(32*u+16*h)*64 + ri*8}")
    k("s_waitcnt lgkmcnt(0)")
    for i in range(8):
        k(f"v_xor_b32 {v(TF+16+i)}, 0x80008000, {v(TF+8+i)}")
    A = R.alloc(32, 4)
    for tt in range(4):
        xr, xi = A + tt*8, A + tt*8 + 4
        k.mfma(xr, oc(tt,0), TF + 0);            k.mfma(xi, os_(tt,0), TF + 0)
        k.mfma(xr, oc(tt,1), TF + 4, xr);        k.mfma(xi, os_(tt,1), TF + 4, xi)
        k.mfma(xr, os_(tt,0), TF + 16, xr);      k.mfma(xi, oc(tt,0), TF + 8, xi)
        k.mfma(xr, os_(tt,1), TF + 20, xr);      k.mfma(xi, oc(tt,1), TF + 12, xi)
    k("s_waitcnt vmcnt(0)")
    Z = R.alloc(24, 4)
    for tt in range(4):
        xr, xi = A + tt*8, A + tt*8 + 4
        for r in range(4):
            wr, wi = WR + tt*4 + r, WI + tt*4 + r
            k(f"v_mul_f32 {v(t+r)}, {v(xr+r)}, {v(wr)}")
            k(f"v_mul_f32 {v(t+4+r)}, {v(xr+r)}, {v(wi)}")
            k(f"v_fma_f32 {v(t+r)}, -{v(xi+r)}, {v(wi)}, {v(t+r)}")
            k(f"v_fmac_f32 {v(t+4+r)}, {v(xi+r)}, {v(wr)}")
        for pr in range(2):
            k(f"v_cvt_pk_bf16_f32 {v(Z + tt*2 + pr)}, {v(t+2*pr)}, {v(t+2*pr+1)}")
            k(f"v_cvt_pk_bf16_f32 {v(Z + 8 + tt*2 + pr)}, {v(t+4+2*pr)}, {v(t+4+2*pr+1)}")
            k(f"v_xor_b32 {v(Z + 16 + tt*2 + pr)}, 0x80008000, {v(Z + tt*2 + pr)}")
    for tt in range(4):
        xr, xi = A + tt*8, A + tt*8 + 4
        k.mfma(xr, Z + 0, oc(tt,0));             k.mfma(xi, Z + 8, oc(tt,0))
        k.mfma(xr, Z + 4, oc(tt,1), xr);         k.mfma(xi, Z + 12, oc(tt,1), xi)
        k.mfma(xr, Z + 8, os_(tt,0), xr);        k.mfma(xi, Z + 16, os_(tt,0), xi)
        k.mfma(xr, Z + 12, os_(tt,1), xr);       k.mfma(xi, Z + 20, os_(tt,1), xi)
    for tt in range(4):
        xr = A + tt*8
        for j in range(4):
            k(f"v_cvt_pk_bf16_f32 {v(WR + tt*4 + j)}, {v(xr+2*j)}, {v(xr+2*j+1)}")
        k(f"buffer_store_dwordx4 {v(WR+tt*4,4)}, {v(vS)}, {s(sWS,4)}, {s(sSTB)} offen")
        if tt < 3: k(f"s_add_u32 {s(sSTB)}, {s(sSTB)}, {s(sSTT)}")
    k.label("k2_end")
    k("s_endpgm")

STG = 28672
AX_LDS = 4 * STG
def kernel3(k):
    prologue(k, "k3_kernel", 256, "k3_end")
    sP, sC = 63, 64
    k(f"s_lshr_b32 s3, {s(sIDX)}, 3")
    k(f"s_lshl_b32 {s(sP)}, {s(sXCD)}, 2")
    k(f"s_add_u32 {s(sP)}, {s(sP)}, s3")
    k(f"s_and_b32 {s(sC)}, {s(sIDX)}, 7")
    vG = 3
    k(f"s_lshr_b32 s3, {s(sWAVE)}, 1")
    k(f"s_lshl_b32 s65, {s(sP)}, 2")
    k(f"s_add_u32 s65, s65, s3")
    k(f"s_lshl_b32 s65, s65, 6")
    k(f"s_add_u32 s65, s65, {hex(G_OFF)}")
    k(f"v_lshlrev_b32 {v(vG)}, 2, {v(vN)}")
    k(f"s_cmp_ge_u32 {s(sWAVE)}, 4")
    k("s_cbranch_scc1 k3_F")
    R = Regs("v", 4, 256)
    t = R.alloc(4, 4)
    vD, vH = R.alloc(), R.alloc()
    vT = R.alloc(4, 4)
    HF = R.alloc(112, 4)
    WF = R.alloc(32, 4)
    acc = R.alloc(64, 4)
    k(f"v_lshrrev_b32 {v(t)}, 1, {v(vL)}")
    k(f"v_xor_b32 {v(t)}, {v(t)}, {v(vQ)}")
    k(f"v_and_b32 {v(t+1)}, 2, {v(t)}")
    k(f"v_and_b32 {v(t)}, 1, {v(t)}")
    k(f"v_lshlrev_b32 {v(t+1)}, 8, {v(t+1)}")
    k(f"v_lshl_add_u32 {v(t)}, {v(t)}, 5, {v(t+1)}")
    k(f"v_and_b32 {v(t+1)}, 1, {v(vL)}")
    k(f"v_lshl_add_u32 {v(t)}, {v(t+1)}, 4, {v(t)}")
    k(f"v_lshrrev_b32 {v(t+1)}, 3, {v(vL)}")
    k(f"v_lshl_add_u32 {v(vD)}, {v(t+1)}, 10, {v(t)}")
    k(f"v_lshlrev_b32 {v(vH)}, 4, {v(vL)}")
    sWo, sHo, sLb = 66, 67, 68
    k(f"s_mul_i32 {s(sWo)}, {s(sWAVE)}, {14*32*1024}")
    k(f"s_lshl_b32 s3, {s(sC)}, 6")
    k(f"s_add_u32 {s(sWo)}, {s(sWo)}, s3")
    k(f"s_mul_i32 {s(sHo)}, {s(sP)}, 56")
    k(f"s_mul_i32 s3, {s(sWAVE)}, 14")
    k(f"s_add_u32 {s(sHo)}, {s(sHo)}, s3")
    k(f"s_lshl_b32 {s(sHo)}, {s(sHo)}, 12")
    k(f"s_mul_i32 {s(sLb)}, {s(sWAVE)}, {STG}")
    k("s_waitcnt lgkmcnt(0)")
    k.srd(sWS, "ws"); k.srd(sW2, "w2")
    k(f"buffer_load_dword {v(vG)}, {v(vG)}, {s(sWS,4)}, s65 offen")
    def issue(st):
        sl = st % 7
        for j in range(4):
            k(f"s_add_u32 m0, {s(sLb)}, {sl*4096 + j*1024}")
            k(f"s_add_u32 s3, {s(sWo)}, {st*32768 + j*8192}")
            k(f"buffer_load_dwordx4 {v(vD)}, {s(sW2,4)}, s3 offen lds")
        k(f"s_add_u32 s3, {s(sHo)}, {st*4096}")
        for rt in range(4):
            k(f"buffer_load_dwordx4 {v(HF + sl*16 + rt*4, 4)}, {v(vH)}, {s(sWS,4)}, s3 offen offset:{rt*1024}")
    for st in range(7): issue(st)
    k.srd(sOUT, "out")
    k(f"v_lshrrev_b32 {v(t)}, 2, {v(vL)}")
    k(f"v_lshrrev_b32 {v(t+1)}, 3, {v(vL)}")
    k(f"v_and_b32 {v(t+1)}, 3, {v(t+1)}")
    k(f"v_lshlrev_b32 {v(t)}, 7, {v(t)}")
    k(f"v_and_b32 {v(t+2)}, 3, {v(vL)}")
    k(f"v_lshl_add_u32 {v(t)}, {v(t+2)}, 3, {v(t)}")
    k(f"v_add_u32 {v(t)}, {s(sLb)}, {v(t)}")
    for dt in range(4):
        k(f"v_xor_b32 {v(t+2)}, {dt}, {v(t+1)}")
        k(f"v_lshl_add_u32 {v(vT+dt)}, {v(t+2)}, 5, {v(t)}")
    def rd(st):
        for dt in range(4):
            for u in range(2):
                k(f"ds_read_b64_tr_b16 {v(WF + (st&1)*16 + dt*4 + 2*u, 2)}, {v(vT+dt)} offset:{(st%7)*4096 + u*2048}")
    k(f"s_waitcnt vmcnt(48)")
    rd(0)
    for st in range(14):
        if st < 13:
            last = min(13, 6 + st)
            k(f"s_waitcnt vmcnt({8*(last - (st+1))})")
            rd(st + 1)
            k("s_waitcnt lgkmcnt(8)")
        else:
            k("s_waitcnt lgkmcnt(0)")
        for dt in range(4):
            for rt in range(4):
                a = acc + (dt*4+rt)*4
                k.mfma(a, WF + (st&1)*16 + dt*4, HF + (st%7)*16 + rt*4, a if st else None)
        if st + 7 < 14: issue(st + 7)
    k(f"v_add_u32 {v(vH)}, {s(sLb)}, {v(vH)}")
    for i in range(16):
        k(f"ds_write_b128 {v(vH)}, {v(acc+i*4,4)} offset:{i*1024}")
    k("s_branch k3_final")
    k.label("k3_F")
    R = Regs("v", 4, 256)
    t = R.alloc(8, 4)
    sS0, sPAR = 66, 67
    k(f"s_and_b32 {s(sPAR)}, {s(sWAVE)}, 1")
    k(f"s_lshr_b32 s3, {s(sWAVE)}, 1")
    k(f"s_and_b32 s3, s3, 1")
    k(f"s_lshl_b32 {s(sS0)}, {s(sP)}, 1")
    k(f"s_add_u32 {s(sS0)}, {s(sS0)}, s3")
    vT, vI = R.alloc(), R.alloc()
    TF = R.alloc(64, 4)
    I = R.alloc(8, 4)
    k(f"v_lshlrev_b32 {v(vI)}, 4, {v(vQ)}")
    k(f"v_lshl_add_u32 {v(vT)}, {v(vN)}, 10, {v(vI)}")
    k(f"s_lshl_b32 s68, {s(sS0)}, 15")
    k(f"s_lshl_b32 s3, {s(sPAR)}, 6")
    k(f"s_add_u32 s68, s68, s3")
    k(f"s_add_u32 s68, s68, {hex(TI_OFF)}")
    k(f"s_add_u32 s69, s68, 16384")
    k(f"s_lshl_b32 s70, {s(sS0)}, 7")
    k(f"s_add_u32 s70, s70, {hex(TI256_OFF)}")
    k("s_waitcnt lgkmcnt(0)")
    k.srd(sWS, "ws")
    k(f"buffer_load_dword {v(vG)}, {v(vG)}, {s(sWS,4)}, s65 offen")
    for jt in range(2):
        k(f"buffer_load_dwordx4 {v(I+4*jt,4)}, {v(vI)}, {s(sWS,4)}, s70 offen offset:{64*jt}")
    for g in range(8):
        for jt in range(2):
            k(f"buffer_load_dwordx4 {v(TF+(jt*8+g)*4,4)}, {v(vT)}, {s(sWS,4)}, {s(68+jt)} offen offset:{g*128}")
    k.srd(sOUT, "out")
    G = R.alloc(96, 4)
    ph, st, base, sc0 = R.alloc(), R.alloc(), R.alloc(), R.alloc()
    k(f"v_lshl_add_u32 {v(base)}, {v(vQ)}, 3, {s(sPAR)}")
    k(f"v_cmp_eq_u32 vcc, 0, {v(base)}")
    k(f"v_cvt_f32_u32 {v(base)}, {v(base)}")
    k(f"v_mul_f32 {v(base)}, 0.5, {v(base)}")
    k(f"v_cndmask_b32 {v(sc0)}, 1.0, 0.5, vcc")
    k(f"s_lshl_b32 s71, {s(sC)}, 5")
    for ct in range(2):
        k(f"v_add_u32 {v(st)}, s71, {v(vN)}")
        if ct: k(f"v_add_u32 {v(st)}, 16, {v(st)}")
        k(f"v_cvt_f32_u32 {v(st)}, {v(st)}")
        k(f"v_mul_f32 {v(st)}, {flit(1/256)}, {v(st)}")
        k(f"v_mul_f32 {v(ph)}, {v(base)}, {v(st)}")
        for g in range(8):
            o = G + (g*2+ct)*6
            k.sincos4(o + 2, o, ph, st, t, scale0=(sc0 if g == 0 else None))
            if g < 7: k(f"v_fmamk_f32 {v(ph)}, {v(st)}, {flit(12.0)}, {v(ph)}")
            k(f"v_xor_b32 {v(o+4)}, 0x80008000, {v(o)}")
            k(f"v_xor_b32 {v(o+5)}, 0x80008000, {v(o+1)}")
    E = R.alloc(16, 4)
    k(f"v_lshlrev_b32 {v(base)}, 2, {v(vQ)}")
    k(f"v_cvt_f32_u32 {v(base)}, {v(base)}")
    for tt in range(2):
        k(f"v_lshl_add_u32 {v(st)}, {v(vN)}, 6, {s(sS0)}")
        if tt: k(f"v_add_u32 {v(st)}, 1024, {v(st)}")
        k(f"v_cvt_f32_u32 {v(st)}, {v(st)}")
        k(f"v_mul_f32 {v(st)}, {flit(-1/2048)}, {v(st)}")
        k(f"v_mul_f32 {v(ph)}, {v(base)}, {v(st)}")
        k.sincos4(E + tt*8, E + tt*8 + 4, ph, st, t)
        k(f"v_fmamk_f32 {v(ph)}, {v(st)}, {flit(12.0)}, {v(ph)}")
        k.sincos4(E + tt*8 + 2, E + tt*8 + 6, ph, st, t)
    V = R.alloc(32, 4)
    va = lambda ct, ri, jt: V + ((ct*2+ri)*2+jt)*4
    k(f"v_lshlrev_b32 {v(sc0)}, 31, {v(vN)}")
    k(f"v_or_b32 {v(sc0)}, 0.5, {v(sc0)}")
    k(f"s_sub_u32 s3, {s(sPAR)}, 1")
    k("s_waitcnt vmcnt(16)")
    for jt in range(2):
        for ri in range(2):
            for pr in range(2):
                src = I + jt*4 + ri*2 + pr
                k(f"v_and_b32 {v(src)}, s3, {v(src)}")
                k(f"v_lshlrev_b32 {v(t)}, 16, {v(src)}")
                k(f"v_and_b32 {v(t+1)}, 0xffff0000, {v(src)}")
                for ct in range(2):
                    k(f"v_mul_f32 {v(va(ct,ri,jt)+2*pr)}, {v(sc0)}, {v(t)}")
                    k(f"v_mul_f32 {v(va(ct,ri,jt)+2*pr+1)}, {v(sc0)}, {v(t+1)}")
    for g in range(8):
        k(f"s_waitcnt vmcnt({14 - 2*g})")
        for jt in range(2):
            for ct in range(2):
                o = G + (g*2+ct)*6
                k.mfma(va(ct,0,jt), TF+(jt*8+g)*4, o + 2, va(ct,0,jt))
                k.mfma(va(ct,1,jt), TF+(jt*8+g)*4, o, va(ct,1,jt))
    VF = TF
    k(f"s_sub_u32 s3, {s(sWAVE)}, 4")
    k(f"s_lshl_b32 s3, s3, 12")
    k(f"s_add_u32 s3, s3, {AX_LDS}")
    k(f"v_lshl_add_u32 {v(vT)}, {v(vL)}, 4, s3")
    for ct in range(2):
        for ri in range(2):
            for jt in range(2):
                for pr in range(2):
                    k(f"v_cvt_pk_bf16_f32 {v(VF+(ct*2+ri)*4+jt*2+pr)}, {v(va(ct,ri,jt)+2*pr)}, {v(va(ct,ri,jt)+2*pr+1)}")
    AO = TF + 16
    for ct in range(2):
        for tt in range(2):
            k.mfma(AO + (ct*2+tt)*4, VF + (ct*2+0)*4, E + tt*8)
    for ct in range(2):
        for tt in range(2):
            k.mfma(AO + (ct*2+tt)*4, VF + (ct*2+1)*4, E + tt*8 + 4, AO + (ct*2+tt)*4)
    for i in range(4):
        k(f"ds_write_b128 {v(vT)}, {v(AO+i*4,4)} offset:{i*1024}")
    k.label("k3_final")
    t = 4
    vB, vA, vO = 8, 9, 10
    D = 12
    k(f"s_lshr_b32 s66, {s(sWAVE)}, 1")
    k(f"s_and_b32 s67, {s(sWAVE)}, 1")
    k(f"v_and_b32 {v(t)}, 1, {v(vQ)}")
    k(f"v_lshlrev_b32 {v(t)}, 9, {v(t)}")
    k(f"v_lshl_add_u32 {v(t)}, {v(vN)}, 4, {v(t)}")
    k(f"v_lshrrev_b32 {v(t+1)}, 1, {v(vQ)}")
    k(f"s_lshl_b32 s68, s67, 3")
    k(f"s_add_u32 s68, s68, s66")
    k(f"s_lshl_b32 s68, s68, 10")
    k(f"v_lshl_add_u32 {v(vB)}, {v(t+1)}, 12, {v(t)}")
    k(f"v_add_u32 {v(vB)}, s68, {v(vB)}")
    k(f"s_lshr_b32 s68, s66, 1")
    k(f"s_lshl_b32 s68, s68, 13")
    k(f"s_and_b32 s69, s66, 1")
    k(f"s_lshl_b32 s3, s69, 10")
    k(f"s_add_u32 s68, s68, s3")
    k(f"s_add_u32 s68, s68, {AX_LDS}")
    k(f"v_lshl_add_u32 {v(vA)}, {v(t+1)}, 11, {v(t)}")
    k(f"v_add_u32 {v(vA)}, s68, {v(vA)}")
    k(f"v_add_u32 {v(t+2)}, {2*STG}, {v(vB)}")
    k(f"v_lshlrev_b32 {v(vO)}, 16, {v(vN)}")
    k(f"v_lshl_add_u32 {v(vO)}, {v(vQ)}, 4, {v(vO)}")
    k(f"s_lshl_b32 s70, {s(sP)}, 1")
    k(f"s_lshr_b32 s3, s66, 1")
    k(f"s_add_u32 s70, s70, s3")
    k(f"s_lshl_b32 s70, s70, 10")
    k(f"s_lshl_b32 s3, s69, 20")
    k(f"s_add_u32 s70, s70, s3")
    k(f"s_lshl_b32 s3, s67, 9")
    k(f"s_add_u32 s70, s70, s3")
    k(f"s_lshl_b32 s3, {s(sC)}, 6")
    k(f"s_add_u32 s70, s70, s3")
    k(f"s_lshl_b32 s71, s67, 31")
    k(f"s_or_b32 s71, s71, 0x3f800000")
    k("s_waitcnt vmcnt(0) lgkmcnt(0)")
    k("s_barrier")
    for w in range(4):
        for h in range(2):
            k(f"ds_read_b128 {v(D + w*8 + h*4, 4)}, {v(vB if w < 2 else t+2)} offset:{(w&1)*STG + h*256}")
    for par in range(2):
        for h in range(2):
            k(f"ds_read_b128 {v(D + 32 + par*8 + h*4, 4)}, {v(vA)} offset:{par*4096 + h*256}")
    k(f"v_sub_f32 {v(t)}, 1.0, {v(vG)}")
    k(f"v_cvt_pk_bf16_f32 {v(t)}, {v(t)}, {v(t)}")
    k(f"v_lshlrev_b32 {v(t)}, 16, {v(t)}")
    k(f"v_mul_f32 {v(t+1)}, {flit(2.0**-19)}, {v(vG)}")
    k("s_waitcnt lgkmcnt(8)")
    for i in range(8): k(f"v_add_f32 {v(D+i)}, {v(D+i)}, {v(D+8+i)}")
    k("s_waitcnt lgkmcnt(4)")
    for i in range(8): k(f"v_add_f32 {v(D+16+i)}, {v(D+16+i)}, {v(D+24+i)}")
    for i in range(8): k(f"v_add_f32 {v(D+i)}, {v(D+i)}, {v(D+16+i)}")
    for i in range(8): k(f"v_mul_f32 {v(D+i)}, {v(t)}, {v(D+i)}")
    k("s_waitcnt lgkmcnt(0)")
    for i in range(8): k(f"v_fma_f32 {v(D+32+i)}, s71, {v(D+40+i)}, {v(D+32+i)}")
    for i in range(8): k(f"v_fmac_f32 {v(D+i)}, {v(t+1)}, {v(D+32+i)}")
    for i in range(4): k(f"v_cvt_pk_bf16_f32 {v(D+8+i)}, {v(D+2*i)}, {v(D+2*i+1)}")
    k(f"buffer_store_dwordx4 {v(D+8,4)}, {v(vO)}, {s(sOUT,4)}, s70 offen")
    k.label("k3_end")
    k("s_endpgm")

def kd(name, vg=256):
    return f""".p2align 6
.amdhsa_kernel {name}
  .amdhsa_next_free_vgpr {vg}
  .amdhsa_next_free_sgpr 96
  .amdhsa_accum_offset {vg}
  .amdhsa_group_segment_fixed_size 0
  .amdhsa_kernarg_size 80
  .amdhsa_user_sgpr_count 2
  .amdhsa_user_sgpr_kernarg_segment_ptr 1
  .amdhsa_system_sgpr_workgroup_id_x 1
.end_amdhsa_kernel"""

def main(out):
    k = K()
    kernel1(k); kernel2(k); kernel3(k)
    rep = []
    lines = []
    for l in k.L:
        lines += l.split("\n")
    body = pad(lines, rep)
    hdr = ["; gated mix of GFNet spectral filter and SiLU FFN (generated by gen1.py)",
           "; @launch kernel=k1_kernel grid=(256,1,1) block=(512,1,1) lds=131072",
           "; @launch kernel=k2_kernel grid=(256,1,1) block=(256,1,1) lds=16384",
           "; @launch kernel=k3_kernel grid=(256,1,1) block=(512,1,1) lds=131072",
           '.amdgcn_target "amdgcn-amd-amdhsa--gfx950"', ".text"]
    tail = ['.section .rodata,"a"', kd("k1_kernel"), kd("k2_kernel"), kd("k3_kernel")]
    open(out, "w").write("\n".join(hdr + body + tail) + "\n")
    print("pads:", len(rep), sum(r for r, _ in rep))
    for r in rep: print("  ", r)

if __name__ == "__main__":
    main(sys.argv[1] if len(sys.argv) > 1 else f"cdna_kernels/{NAME}.s")
```

```python
import re

TRANS = ("v_exp_f32", "v_log_f32", "v_rcp_f32", "v_rsq_f32", "v_sqrt_f32", "v_sin_f32", "v_cos_f32")

def regs_of(tok):
    tok = tok.strip()
    tok = tok.lstrip("-")
    if tok.startswith("abs(") or tok.startswith("|"):
        tok = tok.replace("abs(", "").replace(")", "").replace("|", "")
    m = re.fullmatch(r"([vsa])(\d+)", tok)
    if m:
        return {(m.group(1), int(m.group(2)))}
    m = re.fullmatch(r"([vsa])\[(\d+):(\d+)\]", tok)
    if m:
        return {(m.group(1), i) for i in range(int(m.group(2)), int(m.group(3)) + 1)}
    if tok in ("vcc", "vcc_lo", "vcc_hi"):
        return {("vcc", 0)}
    if tok in ("exec", "exec_lo", "exec_hi"):
        return {("exec", 0)}
    if tok == "m0":
        return {("m0", 0)}
    return set()

class Ins:
    def __init__(self, text):
        self.text = text
        t = text.split(";")[0].strip()
        self.is_label = t.endswith(":")
        self.is_dir = t.startswith(".") or t == ""
        self.op = t.split()[0] if t else ""
        rest = t[len(self.op):].strip()
        self.ops = [o.strip() for o in re.split(r",(?![^\[]*\])", rest)] if rest else []
        self.mods = ""
        if self.ops:
            parts = self.ops[-1].split()
            if parts:
                self.ops[-1] = parts[0]
                self.mods = " ".join(parts[1:])
        op = self.op
        self.mfma = op.startswith("v_mfma")
        self.valu = op.startswith("v_") and not self.mfma
        self.salu = op.startswith("s_") and not op.startswith(("s_load", "s_waitcnt", "s_nop", "s_barrier", "s_memtime", "s_memrealtime", "s_atomic", "s_buffer"))
        self.vmem = op.startswith(("buffer_", "global_", "flat_"))
        self.ds = op.startswith("ds_")
        self.trans = op.replace("_e32", "").replace("_e64", "") in TRANS
        self.defs, self.uses = set(), set()
        self.srcA = self.srcB = self.srcC = set()
        self.store_data = set()
        if self.is_label or self.is_dir:
            return
        R = [regs_of(o) for o in self.ops]
        if self.mfma:
            self.defs = R[0]; self.srcA, self.srcB, self.srcC = R[1], R[2], R[3]
            self.uses = R[1] | R[2] | R[3]
            self.passes = 8 if "32x32x16" in op else 4
        elif self.valu:
            self.defs = set(R[0])
            srcs = R[1:]
            if op.startswith(("v_add_co", "v_sub_co", "v_addc_co", "v_subb_co", "v_subrev_co")):
                self.defs |= R[1]; srcs = R[2:]
            for r in srcs: self.uses |= r
            if op.startswith(("v_fmac", "v_dot2c", "v_pk_fmac")) or "dpp" in self.mods or "row_" in self.mods or "quad_perm" in self.mods:
                self.uses |= R[0]
            if op.startswith("v_permlane"):
                self.defs |= R[1]; self.uses |= R[0]
            if op.startswith("v_cmpx"):
                self.defs |= {("exec", 0)}
            if op.startswith("v_cndmask") and len(self.ops) == 3:
                self.uses |= {("vcc", 0)}
        elif self.vmem:
            is_lds = " lds" in (" " + self.mods) or "load_lds" in op
            self.is_lds = is_lds
            if "load" in op and not is_lds:
                self.defs = set(R[0])
                for r in R[1:]: self.uses |= r
                if "d16" in op: self.uses |= R[0]
            else:
                for r in R: self.uses |= r
                if "store" in op or "atomic" in op:
                    dr = R[0] if op.startswith("buffer_") else R[1]
                    if op.endswith(("x3", "x4")): self.store_data = set(dr)
                    if "atomic" in op and "sc0" in self.mods:
                        self.defs = set(R[0])
            if is_lds: self.uses |= {("m0", 0)}
        elif self.ds:
            if op.startswith(("ds_read", "ds_bpermute", "ds_permute", "ds_swizzle")) or "_rtn" in op:
                self.defs = set(R[0])
                for r in R[1:]: self.uses |= r
            else:
                for r in R: self.uses |= r
        elif op.startswith("s_"):
            if op.startswith(("s_cmp", "s_cbranch", "s_branch", "s_waitcnt", "s_nop", "s_barrier", "s_endpgm", "s_setprio", "s_sleep")):
                for r in R: self.uses |= r
            else:
                if R: self.defs = set(R[0])
                for r in R[1:]: self.uses |= r
                if "saveexec" in op: self.defs |= {("exec", 0)}
    def states(self):
        if self.is_label or self.is_dir or "!nc" in self.text: return 0
        if self.op == "s_nop": return int(self.ops[0], 0) + 1
        return 1

def isv(s): return {r for r in s if r[0] in ("v", "a")}
def iss(s): return {r for r in s if r[0] in ("s", "vcc")}

def need(p, c):
    n = 0
    if p.valu:
        dv, dsr = isv(p.defs), iss(p.defs)
        if c.mfma and dv & c.uses: n = max(n, 2)
        if c.valu and p.trans and not c.trans and dv & c.uses: n = max(n, 1)
        if c.valu and c.op.startswith(("v_readfirstlane", "v_readlane")) and dv & c.uses: n = max(n, 1)
        if c.valu and c.op.startswith("v_permlane") and dv & c.uses: n = max(n, 2)
        if c.valu and ("row_" in c.mods or "quad_perm" in c.mods or "dpp" in c.mods) and dv & c.uses: n = max(n, 2)
        if dsr:
            if c.vmem and dsr & c.uses: n = max(n, 5)
            if c.valu and dsr & c.uses: n = max(n, 4 if c.op.startswith(("v_readlane", "v_writelane")) else 2)
            if c.salu and dsr & c.uses: n = max(n, 1)
        if ("exec", 0) in p.defs:
            if c.mfma: n = max(n, 4)
            if c.valu and c.op.startswith(("v_readfirstlane", "v_readlane", "v_permlane")): n = max(n, 4)
            if c.valu and ("row_" in c.mods or "quad_perm" in c.mods): n = max(n, 5)
        if "op_sel" in p.mods or "sdwa" in p.op or "dst_sel" in p.mods:
            if c.valu and dv & (c.uses | c.defs): n = max(n, 1)
        if p.op.startswith("v_dot"):
            if (c.valu or c.vmem or c.ds or c.mfma) and dv & (c.uses | c.defs):
                same = c.op == p.op
                if same:
                    ab = set()
                    for o in c.ops[1:3]: ab |= regs_of(o)
                    if dv & ab: n = max(n, 3)
                else:
                    n = max(n, 3)
    if p.mfma:
        big = 12 if p.passes == 8 else 8
        ov = 10 if p.passes == 8 else 6
        war = 7 if p.passes == 8 else 3
        if c.mfma:
            if p.defs & (c.srcA | c.srcB): n = max(n, big)
            if p.defs & c.srcC:
                if not (p.defs == c.srcC and p.passes == c.passes): n = max(n, ov)
            elif p.defs & c.defs:
                n = max(n, ov)
        elif c.valu or c.vmem or c.ds:
            if p.defs & (c.uses | c.defs): n = max(n, big)
            if c.valu and p.srcC & c.defs: n = max(n, war)
    if p.salu and ("m0", 0) in p.defs and c.vmem and getattr(c, "is_lds", False): n = max(n, 1)
    if p.salu and ("exec", 0) in p.defs and c.valu and ("row_" in c.mods or "quad_perm" in c.mods): n = max(n, 1)
    if p.vmem and p.store_data and (c.valu or c.mfma or c.ds or c.vmem) and p.store_data & c.defs: n = max(n, 2)
    return n

def pad(lines, report=None):
    out = []
    for text in lines:
        c = Ins(text)
        if not (c.is_label or c.is_dir):
            dist, req = 0, 0
            for p in reversed(out):
                if dist >= 12: break
                if not (p.is_label or p.is_dir):
                    r = need(p, c) - dist
                    if r > req: req = r
                dist += p.states()
            if req > 0:
                out.append(Ins(f"s_nop {req - 1}"))
                if report is not None: report.append((req, text))
        out.append(c)
    return [i.text for i in out]

class Regs:
    def __init__(self, kind, lo, hi):
        self.kind, self.free = kind, [True] * hi
        for i in range(lo): self.free[i] = False
        self.hi = hi; self.peak = lo
    def alloc(self, n=1, align=None):
        if align is None: align = 1 if n == 1 else (2 if n == 2 else 4)
        i = 0
        while i + n <= self.hi:
            if i % align == 0 and all(self.free[i:i + n]):
                for j in range(i, i + n): self.free[j] = False
                self.peak = max(self.peak, i + n)
                return i
            i += 1
        raise RuntimeError(f"out of {self.kind} registers (need {n})")
    def release(self, base, n=1):
        for j in range(base, base + n):
            assert not self.free[j], f"double free {j}"
            self.free[j] = True

def v(i, n=1): return f"v{i}" if n == 1 else f"v[{i}:{i + n - 1}]"
def s(i, n=1): return f"s{i}" if n == 1 else f"s[{i}:{i + n - 1}]"


def cost(text):
    t = text.strip()
    if t.startswith("WAIT"): return 0
    i = Ins(text)
    if i.is_label or i.is_dir: return 0
    if i.trans or i.mfma: return 8
    return 4

def resolve(lines):
    out = []
    cnt = {"v": 0, "l": 0}; done = {"v": 0, "l": 0}; pos = {}
    for text in lines:
        t = text.strip()
        if t.startswith("RESET"):
            done = dict(cnt); pos = {}
            continue
        if t.startswith("WAIT"):
            parts = []
            for a in t.split(";")[0].split()[1:]:
                kind, tag = a.split("=")
                k2, p = pos[tag]
                assert k2 == kind, (tag, kind)
                if p <= done[kind]: continue
                n = min(cnt[kind] - p, 63 if kind == "v" else 15)
                if "!nc" not in t: done[kind] = cnt[kind] - n
                parts.append(("vmcnt" if kind == "v" else "lgkmcnt") + f"({n})")
            if parts: out.append("  s_waitcnt " + " ".join(parts) + (" ; !nc" if "!nc" in t else ""))
            continue
        i = Ins(text)
        nc = "!nc" in text
        kind = "v" if i.vmem else ("l" if i.ds else None)
        if kind:
            if not nc: cnt[kind] += 1
            m = re.search(r"#(\S+)", text)
            if m:
                assert not nc
                pos[m.group(1)] = (kind, cnt[kind])
        if i.op == "s_waitcnt" and not nc:
            for kk, nm in (("v", "vmcnt"), ("l", "lgkmcnt")):
                m = re.search(nm + r"\((\d+)\)", text)
                if m: done[kk] = max(done[kk], cnt[kk] - int(m.group(1)))
        out.append(text)
    return out

def spread(slots, fill, a, b):
    tot = sum(cost(x) for x in fill)
    acc = 0
    for x in fill:
        j = a + min(b - a - 1, int(acc * (b - a) / max(tot, 1)))
        slots[j].append(x)
        acc += cost(x)
```

```python
import sys, struct
from asmlib import *

NAME = "gated_mix__spectral_gfnet__dense_activation_silu__prompt"
OPT = dict(ts=0)
for a in sys.argv[2:]:
    kk, vv = a.split("="); OPT[kk] = int(vv)
TS = OPT["ts"]
def opt(n, d): return OPT.get(n, d)

FT_G, FI_G, FI256_G, FW_G, FH_G, FP_G = 0x400, 0x1000, 0x1800, 0x1880, 0x2000, 0x3000
GATE_G, T256_G, W256_G, T_G, TI_G, H_G, P_G, TS_G = 0x4000, 0x8000, 0xA000, 0x10000, 0x210000, 0x420000, 0xB20000, 0x1400000
TIS = 32896
WS_SIZE = 0x1500000
UP = 114688
NP1 = 9
STG = (28 - NP1) * 4096
FT_L, TX_L, TX256_L, W2P1_L, ZX_L, FL_L = UP, UP + 16384, UP + 24832, UP, UP + 36864, UP + 45056
cW, cT, cTX, cG1, cZ, cS, cR, cA = 0, 16, 32, 48, 64, 80, 96, 112
sX, sW1, sWS, sGW, sWR, sWI, sW2, sOUT = 28, 32, 36, 40, 44, 48, 52, 56
KOFF = dict(x=0, wr=8, wi=16, w1=32, w2=40, gw=48, out=56, ws=72)
SRD = dict(x=sX, w1=sW1, ws=sWS, gw=sGW, wr=sWR, wi=sWI, w2=sW2, out=sOUT)
SIZES = dict(x=2048*512*2, wr=2048*257*2, wi=2048*257*2, w1=512*1792*2, w2=1792*512*2, gw=1024, out=2048*512*2, ws=WS_SIZE)
sWAVE, sXCD, sIDX, sMT, sNT, sRB, sGP, sTO, sTAG = 60, 61, 62, 63, 64, 65, 66, 67, 68
LIMIT = 1 << 17
SPECIAL = 17
MF = "v_mfma_f32_32x32x16_bf16"
vL, vF4, vL16, vFl = 0, 1, 2, 3

def f2u(x): return struct.unpack("<I", struct.pack("<f", x))[0]
def flit(x): return hex(f2u(x))
def mf(d, a, b, c=None): return f"  {MF} {v(d,16)}, {v(a,4)}, {v(b,4)}, {v(c,16) if c is not None else 0}"

class K:
    def __init__(self): self.L = []; self.slow = []; self.n = 0
    def __call__(self, t, tag=None, nc=False):
        if tag: t += f" ; #{tag}"
        if nc: t += " ; !nc"
        self.L.append("  " + t)
    def ext(self, ls): self.L += ls
    def label(self, t): self.L.append(t + ":")
    def wait(self, v=None, l=None):
        self.L.append("  WAIT" + (f" v={v}" if v else "") + (f" l={l}" if l else ""))
    def mfma(self, d, a, b, c=None): self.L.append(mf(d, a, b, c))
    def ptr(self, name):
        self(f"s_load_dwordx2 {s(SRD[name],2)}, s[0:1], {KOFF[name]}")
    def srd(self, name):
        self(f"s_mov_b32 {s(SRD[name]+2)}, {hex(SIZES[name])}")
        self(f"s_mov_b32 {s(SRD[name]+3)}, 0x20000")
    def ts(self, i):
        if TS: self(f"s_memtime s[{70+2*i}:{71+2*i}]")
    def tsend(self):
        if not TS: return
        self("s_waitcnt vmcnt(0)")
        self("s_memtime s[94:95]")
        self("s_memrealtime s[98:99]")
        self("s_mov_b64 exec, -1")
        self("s_waitcnt lgkmcnt(0)")
        for i in range(15): self(f"v_writelane_b32 v4, s{70+2*i}, {i}")
        self(f"v_writelane_b32 v4, {s(sTO)}, 15")
        self(f"s_lshl_b32 s3, s2, 3")
        self(f"s_add_u32 s3, s3, {s(sWAVE)}")
        self(f"s_lshl_b32 s3, s3, 6")
        self(f"s_add_u32 s3, s3, {hex(TS_G)}")
        self("v_lshlrev_b32 v5, 2, v0")
        self("s_mov_b64 exec, 0xffff")
        self(f"buffer_store_dword v4, v5, {s(sWS,4)}, s3 offen")
    def uid(self, p):
        self.n += 1
        return f"{p}{self.n}"
    def lds_probe(self, word):
        tag = self.uid("lp")
        return [f"  ds_read_b32 {v(vFl)}, {v(vF4)} offset:{word} ; #{tag}"], tag
    def lds_check(self, word, need, tag):
        n = self.uid("lc")
        self.slow += [f"slow_{n}:",
                      f"  ds_read_b32 {v(vFl)}, {v(vF4)} offset:{word}",
                      f"  s_add_u32 {s(sTO)}, {s(sTO)}, 1",
                      f"  s_waitcnt lgkmcnt(0)",
                      f"  v_cmp_gt_u32 vcc, {need}, {v(vFl)}",
                      f"  s_cmp_ge_u32 {s(sTO)}, {LIMIT}",
                      f"  s_cbranch_scc1 back_{n}",
                      f"  s_cbranch_vccnz slow_{n}",
                      f"  s_branch back_{n}"]
        return [f"  WAIT l={tag}", f"  v_cmp_gt_u32 vcc, {need}, {v(vFl)}", f"  s_cbranch_vccnz slow_{n}", f"back_{n}:"]
    def lds_wait(self, word, need):
        p, tag = self.lds_probe(word)
        self.ext(p); self.ext(self.lds_check(word, need, tag))
    def gl_probe(self, vaddr, soff, dst):
        tag = self.uid("gp")
        return [f"  buffer_load_dword {v(dst)}, {v(vaddr)}, {s(sWS,4)}, {soff} offen sc1 ; #{tag}"], tag
    def gl_check(self, vaddr, soff, dst, sval, span, tag):
        n = self.uid("gc")
        if span == 1: test = [f"  v_cmp_ne_u32 vcc, {sval}, {v(dst)}"]
        else: test = [f"  v_subrev_u32 {v(dst)}, {sval}, {v(dst)}", f"  v_cmp_lt_u32 vcc, {span-1}, {v(dst)}"]
        self.slow += [f"slow_{n}:",
                      f"  buffer_load_dword {v(dst)}, {v(vaddr)}, {s(sWS,4)}, {soff} offen sc1",
                      f"  s_add_u32 {s(sTO)}, {s(sTO)}, 8",
                      f"  s_waitcnt vmcnt(0)"] + test + [
                      f"  s_cmp_ge_u32 {s(sTO)}, {LIMIT}",
                      f"  s_cbranch_scc1 back_{n}",
                      f"  s_cbranch_vccnz slow_{n}",
                      f"  s_branch back_{n}"]
        return [f"  WAIT v={tag}"] + test + [f"  s_cbranch_vccnz slow_{n}", f"back_{n}:"]
    def gl_wait(self, vaddr, soff, dst, sval, span=1):
        p, tag = self.gl_probe(vaddr, soff, dst)
        self.ext(p); self.ext(self.gl_check(vaddr, soff, dst, sval, span, tag))
    def flush_slow(self):
        self.L.append("  RESET"); self.L += self.slow; self.slow = []; self.L.append("  RESET")

def sincos4(dc, ds_, ph, st, t, scale0=None):
    L = []
    for e in range(4):
        L.append(f"  v_cos_f32 {v(t+e)}, {v(ph)}")
        L.append(f"  v_sin_f32 {v(t+4+e)}, {v(ph)}")
        L.append(f"  v_add_f32 {v(ph)}, {v(ph)}, {v(st)}")
        if scale0 is not None and e == 1:
            L.append(f"  v_mul_f32 {v(t)}, {v(t)}, {v(scale0)}")
    for pr in range(2):
        L.append(f"  v_cvt_pk_bf16_f32 {v(dc+pr)}, {v(t+2*pr)}, {v(t+2*pr+1)}")
        L.append(f"  v_cvt_pk_bf16_f32 {v(ds_+pr)}, {v(t+4+2*pr)}, {v(t+4+2*pr+1)}")
    return L
def group6(o, ph, st, t, scale0=None, last=False):
    L = sincos4(o + 2, o, ph, st, t, scale0)
    if not last: L.append(f"  v_fma_f32 {v(ph)}, {v(st)}, 4.0, {v(ph)}")
    L.append(f"  v_xor_b32 {v(o+4)}, 0x80008000, {v(o)}")
    L.append(f"  v_xor_b32 {v(o+5)}, 0x80008000, {v(o+1)}")
    return L

def prologue(k):
    name = NAME + "_kernel"
    k.L.append(f".globl {name}\n.p2align 8\n.type {name},@function")
    k.label(name)
    k("s_cmp_ge_u32 s2, 256")
    k("s_cbranch_scc1 L_end")
    k.ptr("x"); k.ptr("ws")
    if TS:
        k("s_memrealtime s[96:97]")
        for i in range(1, 12): k(f"s_mov_b32 s{70+2*i}, 0")
    k.ts(0)
    k("v_lshrrev_b32 v1, 6, v0")
    k("v_and_b32 v0, 63, v0")
    k(f"v_readfirstlane_b32 {s(sWAVE)}, v1")
    k(f"s_and_b32 {s(sXCD)}, s2, 7")
    k(f"s_lshr_b32 {s(sIDX)}, s2, 3")
    k(f"s_lshr_b32 s3, {s(sXCD)}, 1")
    k(f"s_lshr_b32 s4, s2, 6")
    k(f"s_lshl2_add_u32 {s(sMT)}, s3, s4")
    k(f"s_and_b32 s3, s2, 1")
    k(f"s_and_b32 {s(sGP)}, {s(sIDX)}, 7")
    k(f"s_lshl3_add_u32 {s(sNT)}, s3, {s(sGP)}")
    k(f"s_lshl1_add_u32 {s(sRB)}, {s(sMT)}, {s(sNT)}")
    k(f"s_and_b32 {s(sRB)}, {s(sRB)}, 7")
    k.srd("x"); k.srd("ws")
    k(f"s_mov_b32 {s(sTO)}, 0")
    k(f"v_lshlrev_b32 {v(vL16)}, 4, {v(vL)}")
    k(f"s_cmp_ge_u32 {s(sWAVE)}, 4")
    k("s_cbranch_scc1 L_F")

def mktag(k, vEp):
    k(f"v_readfirstlane_b32 {s(sTAG)}, {v(vEp)}")
    k(f"s_and_b32 {s(sTAG)}, {s(sTAG)}, -16")
    k(f"s_add_u32 {s(sTAG)}, {s(sTAG)}, 17")

G2 = [(0, st) for st in range(7)] + [(x, st) for x in (1, 2, 3) for st in range(4)] + [(x, st) for x in (1, 2, 3) for st in (4, 5, 6)]
W2CH = [NP1, 12, 15, 18, 21, 24, 28]
def w2pos(sg): return W2P1_L + sg * 4096 if sg < NP1 else (sg - NP1) * 4096

def g_wave(k):
    X, R1, R2, R3, T8 = 16, 144, 176, 208, 240
    vXo, vA0, vA1, vMu, vFa, vEp, vFw, vG4, vTX = 4, 8, 9, 10, 11, 12, 13, 14, 15
    sXb, sS0, sSig, sLg = 4, 5, 14, 15
    xf = lambda vb, j: X + (vb * 4 + j) * 4
    ORD = [0, 4, 1, 5, 2, 6, 3, 7]
    t = T8
    k(f"s_lshl2_add_u32 {s(sS0)}, {s(sMT)}, {s(sWAVE)}")
    k(f"v_and_b32 {v(t)}, 0x1c, {v(vL)}")
    k(f"v_lshlrev_b32 {v(t)}, 16, {v(t)}")
    k(f"v_and_or_b32 {v(t)}, {v(vL16)}, 48, {v(t)}")
    k(f"v_lshrrev_b32 {v(t+1)}, 5, {v(vL)}")
    k(f"v_lshl_or_b32 {v(vXo)}, {v(t+1)}, 6, {v(t)}")
    for i in range(1, 4): k(f"v_add_u32 {v(vXo+i)}, {hex(i << 16)}, {v(vXo)}")
    k(f"s_lshl3_add_u32 {s(sXb)}, {s(sS0)}, {s(sRB)}")
    k(f"s_lshl_b32 {s(sXb)}, {s(sXb)}, 7")
    k("s_waitcnt lgkmcnt(0)")
    k(f"buffer_load_dword {v(vEp)}, off, {s(sWS,4)}, 0 sc1")
    def xld(vb):
        if vb: k(f"s_xor_b32 s3, {s(sXb)}, {vb << 7}")
        for i in range(4):
            k(f"buffer_load_dwordx4 {v(xf(vb,i),4)}, {v(vXo+i)}, {s(sX,4)}, {s(3 if vb else sXb)} offen", tag=f"x{vb}" if i == 3 else None)
    XA0, XA1 = opt("xa0", 2), opt("xa1", 4)
    for vb in ORD[:XA0]: xld(vb)
    k.ts(1)
    TMP, E = R3, R3 + 16
    ph, st = t + 8, t + 9
    k(f"v_and_b32 {v(t+2)}, 31, {v(vL)}")
    k(f"v_cvt_f32_u32 {v(st)}, {v(t+2)}")
    k(f"v_mul_f32 {v(st)}, {flit(-1/32)}, {v(st)}")
    k(f"v_lshl_add_u32 {v(ph)}, {v(t+1)}, 8, {s(sS0)}")
    k(f"v_cvt_f32_u32 {v(ph)}, {v(ph)}")
    k(f"v_mul_f32 {v(ph)}, {flit(1/64)}, {v(ph)}")
    k(f"s_lshr_b32 s3, {s(sRB)}, 2")
    k(f"s_and_b32 s3, s3, {s(sNT)}")
    k(f"s_mul_i32 s3, s3, {flit(0.5)}")
    k(f"v_fma_f32 {v(ph)}, {v(ph)}, {v(st)}, s3")
    k(f"v_or_b32 {v(vMu)}, {s(sNT)}, {v(t+1)}")
    k(f"v_cmp_ne_u32 vcc, 0, {v(vMu)}")
    k(f"v_cndmask_b32 {v(vMu)}, 0, 1.0, vcc")
    k(f"s_lshl_b32 s3, {s(sWAVE)}, 5")
    k(f"s_add_u32 s3, s3, {TX_L}")
    k(f"v_mul_u32_u24 {v(vTX)}, 264, {v(t+2)}")
    k(f"v_lshl_add_u32 {v(vTX)}, {v(t+1)}, 3, {v(vTX)}")
    k(f"v_add_u32 {v(vTX)}, s3, {v(vTX)}")
    k(f"v_bfe_u32 {v(t+2)}, {v(vL)}, 2, 2")
    k(f"v_lshl_add_u32 {v(t+2)}, {v(t+1)}, 4, {v(t+2)}")
    k(f"v_mul_u32_u24 {v(vA0)}, 448, {v(t+2)}")
    k(f"v_and_b32 {v(t+2)}, 16, {v(vL)}")
    k(f"v_lshl_add_u32 {v(vA0)}, {v(t+2)}, 1, {v(vA0)}")
    k(f"v_and_b32 {v(vG4)}, 3, {v(vL)}")
    k(f"v_lshl_add_u32 {v(vA0)}, {v(vG4)}, 3, {v(vA0)}")
    k(f"v_add_u32 {v(vA1)}, {256*224}, {v(vA0)}")
    k(f"v_lshlrev_b32 {v(vG4)}, 2, {v(vG4)}")
    k(f"v_add_u32 {v(vF4)}, {FL_L}, {v(vG4)}")
    k(f"s_lshl2_add_u32 s3, {s(sWAVE)}, {FL_L}")
    k(f"v_mov_b32 {v(vFw)}, s3")
    k(f"v_add_u32 {v(vFa)}, {FT_L}, {v(vL16)}")
    for a in range(4):
        k.ext(sincos4(E + 2*a, E + 8 + 2*a, ph, st, t))
        if a < 3: k(f"v_fma_f32 {v(ph)}, {v(st)}, 4.0, {v(ph)}")
    for i, m in enumerate((0x55555555, 0xaaaaaaaa, 0x33333333, 0xcccccccc)):
        k(f"s_mov_b32 {s(6+2*i)}, {hex(m)}"); k(f"s_mov_b32 {s(7+2*i)}, {hex(m)}")
    k(f"s_lshl_b32 {s(sSig)}, {s(sNT)}, 31")
    k(f"s_or_b32 {s(sSig)}, {s(sSig)}, 0x3f800000")
    k(f"s_mov_b32 {s(sLg)}, {flit(-1.4426950408889634)}")
    k("s_barrier")
    k.ts(2)
    def frd(q):
        return [f"  ds_read_b128 {v(R2 + (q&1)*16 + 4*j, 4)}, {v(vFa)} offset:{q*4096 + j*1024} ; #f{q}_{j}" for j in range(4)]
    def transp(vb):
        L = []
        for stage, (src, dst, qp) in enumerate(((xf(vb, 0), TMP, "[1,0,3,2]"), (TMP, xf(vb, 0), "[2,3,0,1]"))):
            bit = 1 << stage
            for val in range(2):
                L.append(f"  s_mov_b64 vcc, {s(6 + 4*stage + 2*val, 2)}")
                for i in range(4):
                    if bool(i & bit) != bool(val): continue
                    for r in range(4):
                        L.append(f"  v_cndmask_b32_dpp {v(dst+4*i+r)}, {v(src+4*(i^bit)+r)}, {v(src+4*i+r)}, vcc quad_perm:{qp} row_mask:0xf bank_mask:0xf")
        return L
    def p1m(vb):
        acc = R1 + (vb >> 2) * 16; q = vb & 3
        return [[f"  WAIT l=f{q}_{j}", mf(acc, xf(vb, j), R2 + (q&1)*16 + 4*j, None if (q == 0 and j == 0) else acc)] for j in range(4)]
    k.ext(frd(0)); k.ext(frd(1))
    for vb in ORD[XA0:XA1]: xld(vb)
    for n, vb in enumerate(ORD):
        if n + XA1 < 8: xld(ORD[n + XA1])
        k.wait(v=f"x{vb}")
        if n == 0:
            k.ts(3)
            mktag(k, vEp)
            k.ext(transp(vb))
        else:
            if n == 7: k.ts(4)
            sl = p1m(ORD[n-1])
            spread(sl, transp(vb), 0, 4)
            for x in sl: k.ext(x)
            if ORD[n-1] in (4, 5): k.ext(frd(ORD[n-1] - 2))
    for x in p1m(7): k.ext(x)
    sHs, sHm, sFHo, sFHg, sPb, sFPo = 16, 17, 20, 21, 22, 23
    k(f"s_lshl4_add_u32 s3, {s(sMT)}, {s(sNT)}")
    k(f"s_mul_i32 s24, {s(sWAVE)}, {7*1024}")
    k(f"s_add_u32 s24, s24, {hex(H_G)}")
    for x in range(4):
        k(f"s_xor_b32 s25, s3, {x}")
        k(f"s_mul_i32 s25, s25, {28*1024}")
        k(f"s_add_u32 {s(sHs + x)}, s25, s24")
    k(f"s_and_b32 s25, s3, -4")
    k(f"s_add_u32 s26, s25, {s(sWAVE)}")
    k(f"s_lshl4_add_u32 {s(sFHg)}, s26, {hex(FH_G)}")
    k(f"s_and_b32 s26, s3, 3")
    k(f"s_lshl2_add_u32 {s(sFHo)}, s26, {s(sFHg)}")
    k(f"s_lshl2_add_u32 s26, {s(sS0)}, s26")
    k(f"s_lshr_b32 s27, {s(sNT)}, 2")
    k(f"s_lshl2_add_u32 s26, s26, s27")
    k(f"s_lshl2_add_u32 {s(sFPo)}, s26, {hex(FP_G)}")
    k(f"s_lshl_b32 s26, s26, 13")
    k(f"s_add_u32 {s(sPb)}, s26, {hex(P_G)}")
    for i in range(16): k(f"v_fma_f32 {v(R1+i)}, {s(sSig)}, {v(R1+16+i)}, {v(R1+i)}")
    for i in range(8): k(f"v_cvt_pk_bf16_f32 {v(TMP+i)}, {v(R1+2*i)}, {v(R1+2*i+1)}")
    P, Q = R2, R2 + 16
    k.mfma(P, TMP, E); k.mfma(Q, TMP, E + 8)
    k.mfma(P, TMP + 4, E + 4, P); k.mfma(Q, TMP + 4, E + 12, Q)
    vB = vXo
    k(f"v_bfe_u32 {v(t)}, {v(vL)}, 2, 2")
    k(f"v_lshrrev_b32 {v(t+1)}, 5, {v(vL)}")
    k(f"v_lshl_add_u32 {v(t+1)}, {v(t+1)}, 2, {v(t)}")
    k(f"v_lshlrev_b32 {v(t+1)}, 8, {v(t+1)}")
    k(f"v_and_b32 {v(t+2)}, 16, {v(vL)}")
    k(f"v_add_u32 {v(t+2)}, {v(t+2)}, {v(vG4)}")
    k(f"v_lshl_add_u32 {v(t+1)}, {v(t+2)}, 1, {v(t+1)}")
    k(f"v_add_u32 {v(t+1)}, {W2P1_L}, {v(t+1)}")
    for tl in range(4):
        k(f"v_xor_b32 {v(t+2)}, {tl}, {v(t)}")
        k(f"v_lshl_add_u32 {v(vB+tl)}, {v(t+2)}, 6, {v(t+1)}")
    k(f"s_lshl1_add_u32 s3, {s(sWAVE)}, {TX256_L}")
    k(f"v_add_u32 {v(t+3)}, s3, {v(vL16)}")
    k(f"v_cvt_pk_bf16_f32 {v(t+4)}, {v(P+8)}, {v(Q+8)}")
    k(f"v_fma_f32 {v(R1)}, -{v(vMu)}, {v(Q+8)}, {v(P)}")
    k(f"v_fma_f32 {v(R1+8)}, {v(vMu)}, {v(P+8)}, {v(Q)}")
    k(f"ds_write_b16 {v(t+3)}, {v(t+4)}")
    k(f"ds_write_b16_d16_hi {v(t+3)}, {v(t+4)} offset:8")
    for i in range(1, 8):
        k(f"v_sub_f32 {v(R1+i)}, {v(P+i)}, {v(Q+8+i)}")
        k(f"v_add_f32 {v(R1+8+i)}, {v(Q+i)}, {v(P+8+i)}")
    for i in range(8): k(f"v_cvt_pk_bf16_f32 {v(R1+16+i)}, {v(R1+2*i)}, {v(R1+2*i+1)}")
    for ri in range(2):
        for a in range(2):
            k(f"ds_write_b64 {v(vTX)}, {v(R1+16+ri*4+a*2, 2)} offset:{ri*128 + a*16}")
    vOne = vMu
    k(f"v_mov_b32 {v(vOne)}, 1")
    k("s_waitcnt lgkmcnt(0)")
    k(f"ds_write_b32 {v(vFw)}, {v(vOne)} offset:{cT}")
    k.ts(5)
    acc1 = [R3, R3 + 16, R1, R1 + 16]
    acc2 = [X + 16*i for i in range(4)]
    own = lambda st: acc1[st >> 1] + 4 * (st & 1)
    hreg = {}
    for st in range(7): hreg[(0, st)] = own(st)
    free = [X + 64 + 4*i for i in range(16)] + [R3 + 8, R3 + 12, R3 + 24, R3 + 28, R1 + 8]
    for x, st in G2[7:]: hreg[(x, st)] = free.pop(0)
    jobs = []
    for tiles in ((0, 1), (2,), (3,)):
        for vb in range(8):
            for j in range(4):
                for tl in tiles:
                    off = ((64*(vb & 3) + 8*j) * 224 + tl * 64)
                    jobs.append(dict(acc=acc1[tl], first=(vb == 0 and j == 0), B=xf(vb, j), addr=(vA0, vA1)[vb >> 2], offs=(off, off + 224)))
    NG1 = len(jobs)
    for sg, (x, st) in enumerate(G2):
        base = W2P1_L if sg < NP1 else (0 if sg < NP1 + 16 else 65536)
        for tl in range(4):
            off = w2pos(sg) - base
            jobs.append(dict(acc=acc2[tl], first=(sg == 0), B=hreg[(x, st)], addr=vB + tl, offs=(off, off + 2048)))
    NJ = len(jobs)
    D = opt("pfd", 6)
    pre = [[] for _ in range(NJ)]
    def gate(n, word, need):
        p, tag = k.lds_probe(word)
        pre[max(n - 2, 0)] += p
        pre[n] += k.lds_check(word, need, tag)
    for vb in range(8): gate(vb * 8, cW, vb + 1)
    lo = 0
    for c, hi in enumerate(W2CH):
        gate(NG1 + 4*lo, cW, 9 + c); lo = hi
    for tl in range(4):
        pre[NG1 + 4*NP1 + tl] += [f"  v_subrev_u32 {v(vB+tl)}, {W2P1_L}, {v(vB+tl)}"]
        pre[NG1 + 4*(NP1+16) + tl] += [f"  v_add_u32 {v(vB+tl)}, 0x10000, {v(vB+tl)}"]
    def reads(n):
        jb = jobs[n]; r = R2 + (n % 8) * 4
        return pre[n] + [f"  ds_read_b64_tr_b16 {v(r+2*u,2)}, {v(jb['addr'])} offset:{jb['offs'][u]}" + (f" ; #j{n}" if u else "") for u in range(2)]
    head = [[] for _ in range(NJ)]
    fill = [[] for _ in range(NJ)]
    def silu(a, n):
        L = []
        for g in range(0, n, 4):
            tm = T8 + 4 * ((g >> 2) & 1)
            for r in range(4): L.append(f"  v_mul_f32 {v(tm+r)}, {s(sLg)}, {v(a+g+r)}")
            for r in range(4): L.append(f"  v_exp_f32 {v(tm+r)}, {v(tm+r)}")
            for r in range(4): L.append(f"  v_add_f32 {v(tm+r)}, 1.0, {v(tm+r)}")
            for r in range(4): L.append(f"  v_rcp_f32 {v(tm+r)}, {v(tm+r)}")
            for r in range(4): L.append(f"  v_mul_f32 {v(tm+r)}, {v(tm+r)}, {v(a+g+r)}")
            for r in range(2): L.append(f"  v_cvt_pk_bf16_f32 {v(a+g//2+r)}, {v(tm+2*r)}, {v(tm+2*r+1)}")
        return L
    def hst(st, tag=None):
        so = s(sHs)
        return [f"  buffer_store_dwordx4 {v(own(st),4)}, {v(vFa if st >= 4 else vL16)}, {s(sWS,4)}, {so} offen offset:{(st&3)*1024}" + ("" if opt("hplain", 0) else " sc1") + (f" ; #{tag}" if tag else "")]
    vPoll, vTagv = vTX, vEp
    a0, a1, b1 = 66, opt("sa", 102), opt("sb", 126)
    fill[10] += [f"  v_add_u32 {v(vFa)}, 0x1000, {v(vL16)}", f"  v_mov_b32 {v(vTagv)}, {s(sTAG)}"]
    spread(fill, silu(acc1[0], 16) + hst(0) + hst(1) + silu(acc1[1], 16) + hst(2) + hst(3, "hA"), a0, a1)
    spread(fill, silu(acc1[2], 16) + hst(4) + hst(5), max(a1, 98), b1)
    spread(fill, silu(acc1[3], 8) + hst(6, "hB"), NG1 + 2, NG1 + opt("sc", 12))
    fa = opt("fa", 124)
    tsl = lambda i: [f"  s_memtime s[{70+2*i}:{71+2*i}]"] if TS and opt("tsp", 0) == 2 else []
    fill[fa] += tsl(1) + ["  WAIT v=hA"] + tsl(2) + [f"  buffer_store_dword {v(vTagv)}, off, {s(sWS,4)}, {s(sFHo)} sc1"]
    head[NG1 - 1] += [f"  WAIT l=j{NG1-1}", f"  ds_write_b32 {v(vFw)}, {v(vOne)} offset:{cG1}"]
    def hld(x, st, tag):
        if opt("nohld", 0): return []
        if opt("hldplain", 0): return [f"  buffer_load_dwordx4 {v(hreg[(x,st)],4)}, {v(vFa if st >= 4 else vL16)}, {s(sWS,4)}, {s(sHs+x)} offen offset:{(st&3)*1024} ; #{tag}"]
        return [f"  buffer_load_dwordx4 {v(hreg[(x,st)],4)}, {v(vFa if st >= 4 else vL16)}, {s(sWS,4)}, {s(sHs+x)} offen offset:{(st&3)*1024} sc1 ; #{tag}"]
    pa, ca = NG1 + opt("pa", 13), NG1 + opt("ca", 22)
    p, tag = k.gl_probe(vG4, s(sFHg), vPoll)
    if not opt("nopoll", 0):
        fill[pa] += p
        fill[ca] += tsl(3) + k.gl_check(vG4, s(sFHg), vPoll, s(sTAG), 2, tag) + tsl(4)
    fill[ca] += ["  WAIT v=hB", f"  v_add_u32 {v(vTagv)}, 1, {v(vTagv)}", f"  s_add_u32 s24, {s(sTAG)}, 1",
                 f"  buffer_store_dword {v(vTagv)}, off, {s(sWS,4)}, {s(sFHo)} sc1"]
    for x, st in G2[7:19]: fill[ca] += hld(x, st, f"h{x}_{st}")
    pb, cb_ = NG1 + opt("pb", 48), NG1 + opt("cb", 60)
    p, tag = k.gl_probe(vG4, s(sFHg), vPoll)
    if not opt("nopoll", 0):
        fill[pb] += p
        fill[cb_] += tsl(5) + k.gl_check(vG4, s(sFHg), vPoll, "s24", 1, tag) + tsl(6)
    for x, st in G2[19:]: fill[cb_] += hld(x, st, f"h{x}_{st}")
    for sg, (x, st) in enumerate(G2):
        if x and not opt("nohld", 0): head[NG1 + 4*sg] += [f"  WAIT v=h{x}_{st}"]
    tsat = {64: 6, 96: 7, NG1: 8, NG1 + 28: 9, NG1 + 76: 10}
    for n in range(D): k.ext(reads(n))
    for n in range(NJ):
        jb = jobs[n]
        k.ext(head[n])
        if n in tsat: k.ts(tsat[n])
        k.wait(l=f"j{n}")
        k.mfma(jb["acc"], R2 + (n % 8) * 4, jb["B"], None if jb["first"] else jb["acc"])
        if n + D < NJ: k.ext(reads(n + D))
        k.ext(fill[n])
    k.ts(11)
    k(f"v_mov_b32 {v(vTagv)}, {s(sTAG)}")
    k(f"s_add_u32 s24, {s(sPb)}, 0x1000")
    for tl in range(4):
        a = acc2[tl]
        for i in range(8): k(f"v_cvt_pk_bf16_f32 {v(a+i)}, {v(a+2*i)}, {v(a+2*i+1)}")
        for g in range(2):
            k(f"buffer_store_dwordx4 {v(a+4*g,4)}, {v(vL16)}, {s(sWS,4)}, {s(sPb if tl < 2 else 24)} offen offset:{(tl&1)*2048 + g*1024} sc1")
    k("s_waitcnt vmcnt(0)")
    k(f"buffer_store_dword {v(vTagv)}, off, {s(sWS,4)}, {s(sFPo)} sc1")
    k.tsend()
    k("s_endpgm")
    k.flush_slow()

GC = 16
sF, sKT, sCB, sS0F, sPAR = 4, 5, 6, 7, 8
vFw, vH, vC = 4, 5, 6
TF = 248
def gconst_groups(k):
    ph, st, sc0 = 7, 8, 9
    L = []
    a = lambda t_: L.append("  " + t_)
    a(f"s_lshr_b32 s3, {s(sF)}, 1")
    a(f"s_lshl1_add_u32 s3, {s(sCB)}, s3")
    a(f"s_lshl_b32 s3, s3, 5")
    a(f"v_add_u32 {v(st)}, s3, {v(vC)}")
    a(f"v_cvt_f32_u32 {v(st)}, {v(st)}")
    a(f"v_mul_f32 {v(st)}, {flit(1/256)}, {v(st)}")
    a(f"v_lshl_add_u32 {v(ph)}, {v(vH)}, 3, {s(sPAR)}")
    a(f"v_cmp_eq_u32 vcc, 0, {v(ph)}")
    a(f"v_cvt_f32_u32 {v(ph)}, {v(ph)}")
    a(f"v_mul_f32 {v(ph)}, 0.5, {v(ph)}")
    a(f"v_cndmask_b32 {v(sc0)}, 1.0, 0.5, vcc")
    a(f"v_mul_f32 {v(ph)}, {v(ph)}, {v(st)}")
    return L, [group6(GC + 6*z, ph, st, TF, scale0=(sc0 if z == 0 else None), last=(z == 15)) for z in range(16)]
EP = 112
def eprime(k):
    ph, st = 7, 8
    k(f"v_lshl_add_u32 {v(st)}, {v(vC)}, 6, {s(sS0F)}")
    k(f"v_cvt_f32_u32 {v(st)}, {v(st)}")
    k(f"v_mul_f32 {v(st)}, {flit(-1/2048)}, {v(st)}")
    k(f"v_lshlrev_b32 {v(ph)}, 2, {v(vH)}")
    k(f"v_cvt_f32_u32 {v(ph)}, {v(ph)}")
    k(f"v_mul_f32 {v(ph)}, {v(ph)}, {v(st)}")
    for a in range(4):
        k.ext(sincos4(EP + 4*a, EP + 4*a + 2, ph, st, TF))
        if a < 3: k(f"v_fma_f32 {v(ph)}, {v(st)}, 4.0, {v(ph)}")

def f_common(k):
    k.label("L_F")
    t = TF
    if opt("tsp", 0) == 1: k.ts(8)
    k(f"s_cmp_lg_u32 {s(sWAVE)}, 7")
    k("s_cbranch_scc1 L_nopf")
    k("s_getpc_b64 s[10:11]", nc=True)
    k.label("L_pc")
    k(f"v_and_b32 {v(t)}, 15, {v(vL)}", nc=True)
    k(f"s_lshl_b32 s3, {s(sIDX)}, 4", nc=True)
    k(f"v_add_lshl_u32 {v(t)}, {v(t)}, s3, 7", nc=True)
    k(f"s_sub_u32 s10, s10, L_pc-{NAME}_kernel", nc=True)
    k(f"s_subb_u32 s11, s11, 0", nc=True)
    k(f"v_min_u32 {v(t)}, L_end-{NAME}_kernel, {v(t)}", nc=True)
    k(f"global_load_dword v247, {v(t)}, s[10:11]", nc=True)
    k(f"v_mov_b32 {v(t+1)}, 0", nc=True)
    k(f"v_lshlrev_b32 {v(t+2)}, 2, {v(vL)}", nc=True)
    k(f"v_add_u32 {v(t+2)}, {FL_L}, {v(t+2)}", nc=True)
    k(f"ds_write_b32 {v(t+2)}, {v(t+1)}", nc=True)
    k.label("L_nopf")
    for n in ("w1", "w2", "gw", "wr", "wi", "out"): k.ptr(n)
    k(f"s_sub_u32 {s(sF)}, {s(sWAVE)}, 4")
    k(f"v_lshrrev_b32 {v(vH)}, 5, {v(vL)}")
    k(f"v_and_b32 {v(vC)}, 31, {v(vL)}")
    ph, st, ad = 7, 8, 9
    k(f"s_lshr_b32 s3, {s(sNT)}, 1")
    k(f"s_lshl_b32 s3, s3, 5")
    k(f"s_and_b32 s9, {s(sNT)}, 1")
    k(f"s_add_u32 s3, s3, s9")
    k(f"v_and_b32 {v(t)}, 15, {v(vL)}")
    k(f"v_lshl_add_u32 {v(st)}, {v(t)}, 1, s3")
    k(f"v_and_b32 {v(t)}, 16, {v(vL)}")
    k(f"v_cvt_f32_u32 {v(t+1)}, {v(t)}")
    k(f"v_mul_f32 {v(t+1)}, {flit(-1/64)}, {v(t+1)}")
    k(f"v_lshl_add_u32 {v(t)}, {v(st)}, 5, {v(t)}")
    k(f"v_cmp_eq_u32 vcc, 16, {v(t)}")
    k(f"v_cvt_f32_u32 {v(st)}, {v(st)}")
    k(f"v_mul_f32 {v(st)}, {flit(-1/512)}, {v(st)}")
    k(f"v_cndmask_b32 {v(st)}, {v(st)}, 0.5, vcc")
    k(f"v_cndmask_b32 {v(t+1)}, {v(t+1)}, 0, vcc")
    k(f"s_xor_b32 s3, {s(sF)}, {s(sRB)}")
    k(f"s_and_b32 s3, s3, 3")
    k(f"s_lshl_b32 s3, s3, 6")
    k(f"v_lshl_add_u32 {v(ph)}, {v(vH)}, 5, s3")
    k(f"v_cvt_f32_u32 {v(ph)}, {v(ph)}")
    k(f"v_fma_f32 {v(ph)}, {v(ph)}, {v(st)}, {v(t+1)}")
    k(f"s_lshl_b32 s3, {s(sF)}, 12")
    k(f"s_add_u32 s3, s3, {FT_L}")
    k(f"v_add_u32 {v(ad)}, s3, {v(vL16)}")
    k("s_mov_b32 s3, 0")
    if opt("tsp", 0) == 1: k.ts(9)
    k.label("L_ft")
    for pr in range(4):
        for e in range(2):
            k(f"v_cos_f32 {v(t+e)}, {v(ph)}")
            k(f"v_add_f32 {v(ph)}, {v(ph)}, {v(st)}")
        k(f"v_cvt_pk_bf16_f32 {v(12+pr)}, {v(t)}, {v(t+1)}")
    k(f"ds_write_b128 {v(ad)}, {v(12,4)}")
    k(f"s_add_u32 s3, s3, 1")
    k(f"v_add_u32 {v(ad)}, 1024, {v(ad)}")
    k(f"s_cmp_lt_u32 s3, 4")
    k(f"s_waitcnt lgkmcnt(0)")
    k("s_cbranch_scc1 L_ft")
    if opt("tsp", 0) == 1: k.ts(10)
    for n in ("w1", "w2", "gw", "wr", "wi", "out"): k.srd(n)
    k(f"s_lshr_b32 {s(sKT)}, {s(sNT)}, 2")
    k(f"s_and_b32 {s(sCB)}, {s(sNT)}, 3")
    k(f"s_lshl2_add_u32 {s(sS0F)}, {s(sMT)}, {s(sKT)}")
    k(f"s_and_b32 {s(sPAR)}, {s(sF)}, 1")
    k(f"v_and_b32 {v(vF4)}, 3, {v(vL)}")
    k(f"v_lshlrev_b32 {v(vF4)}, 2, {v(vF4)}")
    k(f"v_add_u32 {v(vF4)}, {FL_L}, {v(vF4)}")
    k(f"s_lshl3_add_u32 s3, {s(sPAR)}, {FL_L}")
    k(f"v_mov_b32 {v(vFw)}, s3")
    k(f"s_cmp_ge_u32 {s(sF)}, 2")
    k("s_cbranch_scc1 L_F23")

def f01(k):
    t = TF
    O, W, TD, XA = 112, 160, 176, 208
    vEp, vT0, vT1, vPa, vZ, vSt = 10, 11, 12, 13, 14, 15
    sJ1, sTb, sOb, sFo, sPo, sPass = 9, 10, 11, 12, 13, 14
    k.ts(1)
    k("s_barrier")
    ph, st = 7, 8
    k(f"s_lshl_b32 s3, {s(sF)}, 5")
    k(f"v_add_u32 {v(st)}, s3, {v(vC)}")
    k(f"v_cvt_f32_u32 {v(st)}, {v(st)}")
    k(f"v_mul_f32 {v(st)}, {flit(-1/64)}, {v(st)}")
    k(f"v_lshl_add_u32 {v(ph)}, {v(vH)}, 2, s3")
    k(f"v_cvt_f32_u32 {v(ph)}, {v(ph)}")
    k(f"v_mul_f32 {v(ph)}, {v(ph)}, {v(st)}")
    for g in range(8): k.ext(group6(O + 6*g, ph, st, t, last=(g == 7)))
    k(f"buffer_load_dword {v(vEp)}, off, {s(sWS,4)}, 0 sc1", tag="ep")
    L, groups = gconst_groups(k)
    k.ext(L)
    for g in groups: k.ext(g)
    k.ts(2)
    k(f"s_lshr_b32 s3, s2, 6")
    k(f"s_lshl2_add_u32 {s(sJ1)}, {s(sXCD)}, s3")
    k(f"v_lshrrev_b32 {v(t)}, 4, {v(vL)}")
    k(f"v_mul_u32_u24 {v(t+1)}, 264, {v(t)}")
    k(f"v_and_b32 {v(t+2)}, 15, {v(vL)}")
    k(f"v_lshl_add_u32 {v(t+1)}, {v(t+2)}, 3, {v(t+1)}")
    k(f"s_mul_i32 s3, {s(sF)}, {16*264}")
    k(f"s_add_u32 s3, s3, {TX_L}")
    k(f"v_add_u32 {v(t+1)}, s3, {v(t+1)}")
    k(f"v_lshlrev_b32 {v(t+2)}, 4, {v(t+2)}")
    k(f"v_lshl_add_u32 {v(t+3)}, {v(t)}, 16, {v(t+2)}")
    k(f"s_lshl_b32 s3, {s(sF)}, 8")
    k(f"s_add_u32 s15, s3, {TX256_L}")
    k(f"v_add_u32 {v(t+4)}, s15, {v(t+2)}")
    k(f"s_add_u32 s3, s3, {s(sNT)}")
    k(f"s_lshl4_add_u32 s3, s3, {s(sMT)}")
    k(f"s_lshl_b32 s15, s3, 8")
    k(f"s_add_u32 s15, s15, {hex(T_G)}")
    k(f"s_lshl4_add_u32 s16, {s(sF)}, {s(sNT)}")
    k(f"s_lshl4_add_u32 s16, s16, {s(sMT)}")
    k(f"s_lshl2_add_u32 s16, s16, {hex(FT_G)}")
    k(f"s_lshl4_add_u32 s17, {s(sF)}, {s(sMT)}")
    k(f"s_lshl_b32 s17, s17, 8")
    k(f"s_add_u32 s17, s17, {hex(T256_G)}")
    k.wait(v="ep")
    mktag(k, vEp)
    k(f"v_mov_b32 {v(vEp)}, {s(sTAG)}")
    k(f"v_mov_b32 {v(vEp+1)}, {s(sTAG)}")
    k.lds_wait(cT, 1)
    k.ts(3)
    for it in range(4):
        for ri in range(2):
            k(f"ds_read_b64_tr_b16 {v(TD + 4*it + 2*ri, 2)}, {v(t+1)} offset:{it*4*264 + ri*128}", tag=f"tx{it}" if ri else None)
    k(f"ds_read_b128 {v(TD+16,4)}, {v(t+4)}", tag="tx4")
    for it in range(4):
        k.wait(l=f"tx{it}")
        k(f"buffer_store_dwordx4 {v(TD+4*it,4)}, {v(t+3)}, {s(sWS,4)}, s15 offen sc1")
        if it < 3: k(f"s_add_u32 s15, s15, 0x40000")
    k.wait(l="tx4")
    k(f"s_cmp_lg_u32 {s(sNT)}, 0")
    k("s_cbranch_scc1 L_no256")
    k(f"buffer_store_dwordx4 {v(TD+16,4)}, {v(t+2)}, {s(sWS,4)}, s17 offen sc1", nc=True)
    k.label("L_no256")
    k(f"ds_write_b64 {v(vFw)}, {v(vEp,2)} offset:{cTX}")
    k(f"v_lshl_add_u32 {v(t+5)}, {v(t)}, 16, {v(t+2)}")
    k(f"s_lshl1_add_u32 s3, {s(sCB)}, {s(sF)}")
    k(f"s_lshl_b32 s18, s3, 18")
    k(f"s_lshl_b32 s19, {s(sS0F)}, 10")
    k(f"s_add_u32 s18, s18, s19")
    k(f"s_lshl3_add_u32 s19, {s(sS0F)}, s3")
    k(f"s_lshl4_add_u32 s19, s19, {hex(GATE_G)}")
    k(f"v_lshrrev_b32 {v(t+6)}, 2, {v(t+2)}")
    k(f"v_and_b32 {v(t+7)}, 1, {v(t)}")
    k(f"v_lshl_add_u32 {v(t+6)}, {v(t+7)}, 1, {v(t+6)}")
    k(f"s_mov_b32 s3, {128*514}")
    k(f"v_mad_u32_u24 {v(t+6)}, {v(vH)}, s3, {v(t+6)}")
    k(f"s_lshl_b32 s20, {s(sF)}, 10")
    k(f"s_add_u32 s20, s20, {s(sJ1)}")
    k(f"s_mul_i32 s20, s20, 514")
    k(f"s_lshl_b32 s3, {s(sGP)}, 6")
    k(f"s_add_u32 s21, s20, s3")
    k(f"v_lshl_add_u32 {v(vT0)}, {v(t+7)}, 12, {v(t+2)}")
    k(f"v_lshl_add_u32 {v(vT0)}, {v(vH)}, 8, {v(vT0)}")
    k(f"s_lshl_b32 s3, {s(sF)}, 11")
    k(f"v_add_u32 {v(vT0)}, s3, {v(vT0)}")
    k(f"v_xor_b32 {v(vT1)}, 0x800, {v(vT0)}")
    k(f"s_lshl3_add_u32 s3, {s(sJ1)}, {s(sGP)}")
    k(f"s_lshl_b32 {s(sTb)}, s3, 13")
    k(f"s_add_u32 {s(sTb)}, {s(sTb)}, {hex(T_G)}")
    k(f"s_mul_i32 s22, {s(sF)}, {32*TIS}")
    k(f"s_add_u32 s22, s22, {hex(TI_G)}")
    k(f"s_lshl_b32 {s(sOb)}, s3, 7")
    k(f"s_add_u32 {s(sOb)}, {s(sOb)}, s22")
    k(f"s_lshl_b32 {s(sFo)}, {s(sF)}, 8")
    k(f"s_add_u32 {s(sFo)}, {s(sFo)}, s3")
    k(f"s_lshl2_add_u32 {s(sFo)}, {s(sFo)}, {hex(FI_G)}")
    k(f"s_lshr_b32 s3, {s(sJ1)}, 4")
    k(f"s_lshl3_add_u32 s3, s3, {s(sGP)}")
    k(f"s_lshl_b32 {s(sPo)}, s3, 7")
    k(f"s_add_u32 {s(sPo)}, {s(sPo)}, {hex(FT_G)}")
    k(f"v_lshlrev_b32 {v(vPa)}, 2, {v(vC)}")
    k(f"s_lshl_b32 s3, {s(sF)}, 12")
    k(f"s_add_u32 s3, s3, {ZX_L}")
    k(f"v_add_u32 {v(vZ)}, s3, {v(vL16)}")
    k(f"v_mul_u32_u24 {v(vSt)}, {TIS//16}, {v(t+2)}")
    k(f"v_lshl_add_u32 {v(vSt)}, {v(t+7)}, 5, {v(vSt)}")
    k(f"v_lshl_add_u32 {v(vSt)}, {v(vH)}, 4, {v(vSt)}")
    k(f"s_mov_b32 {s(sPass)}, 1")
    k("s_waitcnt vmcnt(0)")
    k(f"buffer_store_dword {v(vEp)}, off, {s(sWS,4)}, s16 sc1")
    k.ts(4)
    GX, GWr = TD, TD + 16
    for i in range(4):
        k(f"buffer_load_dwordx4 {v(GX+4*i,4)}, {v(t+5)}, {s(sX,4)}, s18 offen offset:{256*i}")
        k(f"buffer_load_dwordx4 {v(GWr+4*i,4)}, {v(t+2)}, {s(sGW,4)}, 0 offen offset:{256*i}", tag="gate" if i == 3 else None)
    for i in range(16):
        if i: k(f"s_add_u32 s21, s21, {(32 if i & 3 else 32*5) * 514}")
        k(f"buffer_load_ushort {v(XA+i)}, {v(t+6)}, {s(sWR,4)}, s21 offen")
        k(f"buffer_load_ushort {v(XA+16+i)}, {v(t+6)}, {s(sWI,4)}, s21 offen", tag="w" if i == 15 else None)
    k.wait(v="gate")
    k(f"v_mov_b32 {v(t+1)}, 0")
    for i in range(16): k(f"v_dot2_f32_bf16 {v(t+1)}, {v(GX+i)}, {v(GWr+i)}, {v(t+1)}")
    for sh in (8, 4, 2, 1): k(f"v_add_f32_dpp {v(t+1)}, {v(t+1)}, {v(t+1)} row_ror:{sh} row_mask:0xf bank_mask:0xf")
    k(f"v_cvt_pk_bf16_f32 {v(t+1)}, {v(t+1)}, {v(t+1)}")
    k(f"v_lshlrev_b32 {v(t+1)}, 16, {v(t+1)}")
    k(f"v_mul_f32 {v(t+1)}, {flit(-1.4426950408889634)}, {v(t+1)}")
    k(f"v_exp_f32 {v(t+1)}, {v(t+1)}")
    k(f"v_add_f32 {v(t+1)}, 1.0, {v(t+1)}")
    k(f"v_rcp_f32 {v(t+1)}, {v(t+1)}")
    k(f"v_lshlrev_b32 {v(t)}, 2, {v(t)}")
    k(f"v_cvt_pk_bf16_f32 {v(t+1)}, {v(t+1)}, {v(t+1)}")
    k(f"v_lshlrev_b32 {v(t+1)}, 16, {v(t+1)}")
    k(f"buffer_store_dword {v(t+1)}, {v(t)}, {s(sWS,4)}, s19 offen sc1")
    k.wait(v="w")
    for i in range(16): k(f"v_lshl_or_b32 {v(W+i)}, {v(XA+16+i)}, 16, {v(XA+i)}")
    k(f"s_cmp_lg_u32 {s(sGP)}, 7")
    k("s_cbranch_scc1 L_p2")
    k(f"v_mul_u32_u24 {v(t+2)}, {32*514}, {v(vC)}", nc=True)
    k(f"buffer_load_ushort {v(t+3)}, {v(t+2)}, {s(sWR,4)}, s20 offen offset:512", nc=True)
    k(f"buffer_load_ushort {v(t+4)}, {v(t+2)}, {s(sWI,4)}, s20 offen offset:512", nc=True)
    k(f"s_lshl1_add_u32 s3, {s(sJ1)}, {s(sF)}", nc=True)
    k(f"s_lshl_b32 s3, s3, 7", nc=True)
    k(f"s_add_u32 s15, s3, {hex(W256_G)}", nc=True)
    k(f"s_lshl_b32 s3, {s(sF)}, 5", nc=True)
    k(f"s_add_u32 s3, s3, {s(sJ1)}", nc=True)
    k(f"s_lshl2_add_u32 s16, s3, {hex(FW_G)}", nc=True)
    k("s_waitcnt vmcnt(0)", nc=True)
    k(f"v_lshl_or_b32 {v(t+3)}, {v(t+4)}, 16, {v(t+3)}", nc=True)
    k(f"buffer_store_dword {v(t+3)}, {v(vPa)}, {s(sWS,4)}, s15 offen sc1", nc=True)
    k("s_waitcnt vmcnt(0)", nc=True)
    k(f"buffer_store_dword {v(vEp)}, off, {s(sWS,4)}, s16 sc1", nc=True)
    k.label("L_p2")
    k.gl_wait(vPa, s(sPo), vFl, s(sTAG))
    k.ts(5)
    for g in range(8):
        k(f"buffer_load_dwordx4 {v(TD+4*g,4)}, {v(vT0 if g < 4 else vT1)}, {s(sWS,4)}, {s(sTb)} offen offset:{(g&3)*512} sc1", tag=f"t{g}")
    XR, XI = XA, XA + 16
    for g in range(8):
        k.wait(v=f"t{g}")
        k.mfma(XR, O + 6*g + 2, TD + 4*g, XR if g else None)
        k.mfma(XI, O + 6*g, TD + 4*g, XI if g else None)
        if g >= 4:
            for e in range(4):
                i = 4*(g-4) + e
                k(f"v_lshlrev_b32 {v(TD+i)}, 16, {v(W+i)}")
                k(f"v_and_b32 {v(W+i)}, 0xffff0000, {v(W+i)}")
    k.ts(6)
    ZO = TD + 16
    for a in range(4):
        for e in range(4):
            i = 4*a + e
            k(f"v_mul_f32 {v(t+e)}, {v(XR+i)}, {v(W+i)}")
            k(f"v_mul_f32 {v(t+4+e)}, {v(XR+i)}, {v(TD+i)}")
        for e in range(4):
            i = 4*a + e
            k(f"v_fmac_f32 {v(t+e)}, {v(XI+i)}, {v(TD+i)}")
            k(f"v_fma_f32 {v(t+4+e)}, -{v(XI+i)}, {v(W+i)}, {v(t+4+e)}")
        for j in range(4): k(f"v_cvt_pk_bf16_f32 {v(ZO+4*a+j)}, {v(t+2*j)}, {v(t+2*j+1)}")
        k(f"ds_write_b128 {v(vZ)}, {v(ZO+4*a,4)} offset:{a*1024}")
    k(f"v_mov_b32 {v(t)}, {s(sPass)}")
    k(f"v_mov_b32 {v(t+1)}, {s(sPass)}")
    k(f"v_xor_b32 {v(t+2)}, {hex(ZX_L ^ (ZX_L + 4096))}, {v(vZ)}")
    k("s_waitcnt lgkmcnt(0)")
    k(f"ds_write_b64 {v(vFw)}, {v(t,2)} offset:{cZ}")
    for g in range(2):
        k.mfma(XR, ZO + 4*g, O + 6*g, XR if g else None)
        k.mfma(XI, ZO + 4*g, O + 6*g + 2, XI if g else None)
    if opt("tsp", 0) == 2: k.ts(8)
    k.lds_wait(cZ, s(sPass))
    for g in range(4): k(f"ds_read_b128 {v(TD+4*g,4)}, {v(t+2)} offset:{g*1024}", tag=f"z{g}")
    for g in range(2, 8):
        if g >= 4: k.wait(l=f"z{g-4}")
        z = ZO + 4*g if g < 4 else TD + 4*(g-4)
        k.mfma(XR, z, O + 6*g, XR)
        k.mfma(XI, z, O + 6*g + 2, XI)
    k(f"s_add_u32 s15, {s(sOb)}, {16*TIS}")
    if opt("tsp", 0) == 2: k.ts(9)
    for a in range(4):
        for j in range(2):
            k(f"v_cvt_pk_bf16_f32 {v(W+4*a+j)}, {v(XR+4*a+2*j)}, {v(XR+4*a+2*j+1)}")
            k(f"v_cvt_pk_bf16_f32 {v(W+4*a+2+j)}, {v(XI+4*a+2*j)}, {v(XI+4*a+2*j+1)}")
        if a & 1:
            for j in range(4): k(f"v_permlane16_swap_b32 {v(W+4*a-4+j)}, {v(W+4*a+j)}")
            if not opt("noti", 0):
                k(f"buffer_store_dwordx4 {v(W+4*a-4,4)}, {v(vSt)}, {s(sWS,4)}, {s(sOb)} offen offset:{(a>>1)*64} sc1")
                k(f"buffer_store_dwordx4 {v(W+4*a,4)}, {v(vSt)}, {s(sWS,4)}, s15 offen offset:{(a>>1)*64} sc1")
    if opt("tsp", 0) == 2: k.ts(10)
    k("s_waitcnt vmcnt(0)")
    k(f"buffer_store_dword {v(vEp)}, off, {s(sWS,4)}, {s(sFo)} sc1")
    k(f"s_lshl_b32 s3, {s(sPass)}, 8")
    k(f"s_or_b32 s3, s3, s2")
    k(f"s_cmp_lg_u32 s3, {256 + SPECIAL}")
    k("s_cbranch_scc1 L_p2done")
    k(f"v_mov_b32 {v(t)}, 2"); k(f"v_mov_b32 {v(t+1)}, 2")
    k(f"ds_write_b64 {v(vFw)}, {v(t,2)} offset:{cZ}")
    k(f"s_lshl_b32 s15, {s(sF)}, 7")
    k(f"s_add_u32 s16, s15, {hex(FW_G)}")
    k.gl_wait(vPa, "s16", vFl, s(sTAG))
    k(f"v_lshlrev_b32 {v(t)}, 8, {v(vC)}")
    k(f"v_lshl_add_u32 {v(t)}, {v(vH)}, 4, {v(t)}")
    k(f"s_add_u32 s16, s15, {hex(W256_G)}")
    for a in range(4): k(f"buffer_load_dwordx4 {v(W+4*a,4)}, {v(t)}, {s(sWS,4)}, s16 offen offset:{32*a} sc1")
    k.lds_wait(cZ, 2)
    k(f"s_mov_b32 {s(sPass)}, 3")
    k(f"s_mov_b32 {s(sTb)}, {hex(T256_G)}")
    k(f"s_add_u32 {s(sOb)}, s22, 32768")
    k(f"s_lshl2_add_u32 {s(sFo)}, {s(sF)}, {hex(FI256_G)}")
    k(f"s_mov_b32 {s(sPo)}, {hex(FT_G)}")
    k(f"v_and_b32 {v(t)}, 16, {v(vL)}")
    k(f"v_mul_u32_u24 {v(t)}, 60, {v(t)}")
    k(f"v_add_u32 {v(vPa)}, {v(vPa)}, {v(t)}")
    k("s_branch L_p2")
    k.label("L_p2done")
    k.ts(7)
    eprime(k)
    k.lds_wait(cG1, 1)
    k("s_branch L_p3")
    k.flush_slow()

def f23(k):
    k.label("L_F23")
    t = TF
    vD0, vD1, vCnt = 10, 11, 12
    k(f"v_mul_u32_u24 {v(t)}, 4682, {v(vL)}")
    k(f"v_lshrrev_b32 {v(t)}, 16, {v(t)}")
    k(f"v_and_b32 {v(t+1)}, 1, {v(t)}")
    k(f"v_lshrrev_b32 {v(t+2)}, 1, {v(t)}")
    k(f"v_lshl_add_u32 {v(t+1)}, {v(t+1)}, 2, {v(t+2)}")
    k(f"v_mul_u32_u24 {v(t+1)}, 3584, {v(t+1)}")
    k(f"v_mul_u32_u24 {v(t)}, 224, {v(t)}")
    k(f"v_sub_u32 {v(t)}, {v(vL16)}, {v(t)}")
    k(f"v_add_u32 {v(vD0)}, {v(t)}, {v(t+1)}")
    k(f"v_add_u32 {v(vD1)}, {28672 - 1792}, {v(vD0)}")
    k(f"s_mul_i32 s9, {s(sNT)}, 224")
    k(f"s_mul_i32 s3, {s(sPAR)}, {2*3584}")
    k(f"s_add_u32 s9, s9, s3")
    k(f"s_mul_i32 s10, {s(sPAR)}, {4*224}")
    L, groups = gconst_groups(k)
    LA = opt("la", 3)
    def sig(n, tag):
        k(f"v_mov_b32 {v(vCnt)}, {n}"); k(f"v_mov_b32 {v(vCnt+1)}, {n}")
        k.wait(v=tag)
        k(f"ds_write_b64 {v(vFw)}, {v(vCnt,2)} offset:{cW}")
    def w1dma(vb):
        k(f"s_xor_b32 s3, {s(sRB)}, {vb}")
        k(f"s_mul_i32 s3, s3, {64*3584}")
        k("s_mov_b32 exec_hi, 0xffffff")
        for i in range(0, 8, 2):
            k(f"s_add_u32 m0, s10, {(64*vb + 8*i) * 224}")
            k(f"s_add_u32 s11, s11, {2*28672}" if i else f"s_add_u32 s11, s3, s9")
            k(f"buffer_load_dwordx4 {v(vD0)}, {s(sW1,4)}, s11 offen lds")
            k(f"buffer_load_dwordx4 {v(vD1)}, {s(sW1,4)}, s11 offen offset:1792 lds", tag=f"w{vb}" if i == 6 else None)
        k("s_mov_b32 exec_hi, -1")
    W0 = opt("w0", 2)
    k.ts(1)
    k("s_barrier")
    for vb in range(W0): w1dma(vb)
    k.ts(6)
    k.ext(L)
    NE = opt("ne", 16)
    for g in groups[:NE]: k.ext(g)
    k.ts(2)
    nsig = 0
    for vb in range(W0, 8):
        w1dma(vb)
        while nsig <= vb - LA:
            sig(nsig + 1, f"w{nsig}"); nsig += 1
    while nsig < 8:
        sig(nsig + 1, f"w{nsig}"); nsig += 1
    k.ts(3)
    k(f"v_lshrrev_b32 {v(t)}, 4, {v(vL)}")
    k(f"v_bfe_u32 {v(t+1)}, {v(vL)}, 2, 2")
    k(f"v_xor_b32 {v(t+1)}, {v(t+1)}, {v(t)}")
    k(f"v_lshlrev_b32 {v(t)}, 10, {v(t)}")
    k(f"v_and_or_b32 {v(t)}, {v(vL16)}, 48, {v(t)}")
    k(f"v_and_b32 {v(t+2)}, 1, {v(t+1)}")
    k(f"v_lshl_add_u32 {v(t)}, {v(t+2)}, 6, {v(t)}")
    k(f"v_and_b32 {v(t+2)}, 2, {v(t+1)}")
    k(f"v_lshl_add_u32 {v(vD0)}, {v(t+2)}, 8, {v(t)}")
    k(f"v_add_u32 {v(vD1)}, 3072, {v(vD0)}")
    k(f"s_lshl_b32 s9, {s(sCB)}, 7")
    k(f"s_lshl_b32 s3, {s(sPAR)}, 13")
    k(f"s_add_u32 s9, s9, s3")
    for x in range(4):
        k(f"s_xor_b32 s3, {s(sNT)}, {x}")
        k(f"s_mul_i32 s3, s3, {112*1024}")
        k(f"s_add_u32 {s(12+x)}, s3, s9")
    k(f"s_lshl_b32 s10, {s(sPAR)}, 11")
    k.lds_wait(cTX, 1)
    k(f"v_readfirstlane_b32 {s(sTAG)}, {v(vFl)}")
    def w2dma(sg):
        x, st = G2[sg]
        k(f"s_add_u32 m0, s10, {w2pos(sg)}")
        k(f"s_add_u32 s11, {s(12+x)}, {st*16384}")
        k(f"buffer_load_dwordx4 {v(vD0)}, {s(sW2,4)}, s11 offen lds")
        k(f"buffer_load_dwordx4 {v(vD1)}, {s(sW2,4)}, s11 offen offset:1024 lds", tag=f"u{sg}")
    for sg in range(NP1): w2dma(sg)
    for g in groups[NE:]: k.ext(g)
    eprime(k)
    sig(9, f"u{NP1-1}")
    k.ts(4)
    k.lds_wait(cG1, 1)
    k.ts(5)
    LB = opt("lb", 2)
    for c in range(1, len(W2CH)):
        for sg in range(W2CH[c-1], W2CH[c]): w2dma(sg)
        if c > LB: sig(9 + c - LB, f"u{W2CH[c-LB]-1}")
    for c in range(len(W2CH) - LB, len(W2CH)): sig(9 + c, f"u{W2CH[c]-1}")
    k.ts(7)

def p3(k):
    k.label("L_p3")
    k.L.append("  RESET")
    t = TF
    TD, VR, VI, AO, OT = 128, 192, 208, 224, 16
    vPa, vG, vOne = 10, 11, 12
    vRd = 240
    k(f"v_lshlrev_b32 {v(vPa)}, 2, {v(vL)}")
    k(f"s_lshr_b32 s9, {s(sS0F)}, 5")
    k(f"s_lshl2_add_u32 s3, s9, {s(sF)}")
    k(f"s_lshl_b32 s3, s3, 8")
    k(f"s_add_u32 s10, s3, {hex(FI_G)}")
    p, tag = k.gl_probe(vPa, "s10", vFl)
    k.ext(p)
    k(f"s_mul_i32 s11, {s(sS0F)}, {TIS}")
    k(f"s_add_u32 s11, s11, {hex(TI_G)}")
    k(f"s_lshl_b32 s3, {s(sF)}, 13")
    k(f"s_add_u32 s12, s11, s3")
    k(f"s_add_u32 s13, s12, 0x1000")
    k(f"s_add_u32 s14, s3, {STG}")
    k(f"s_lshl_b32 s3, {s(sPAR)}, 7")
    k(f"v_xor_b32 {v(t)}, s3, {v(vL16)}")
    k(f"v_add_u32 {v(t)}, s14, {v(t)}")
    k(f"s_lshl2_add_u32 s3, {s(sF)}, {FL_L}")
    k(f"v_mov_b32 {v(vFw)}, s3")
    k(f"v_mov_b32 {v(vOne)}, 1")
    k(f"s_lshl_b32 s3, {s(sPAR)}, 2")
    k(f"v_or_b32 {v(t+1)}, s3, {v(vH)}")
    k(f"v_and_b32 {v(t+2)}, 15, {v(vL)}")
    k(f"v_xor_b32 {v(t+1)}, {v(t+1)}, {v(t+2)}")
    k(f"v_lshlrev_b32 {v(t+1)}, 4, {v(t+1)}")
    k(f"v_lshl_add_u32 {v(t+1)}, {v(vC)}, 10, {v(t+1)}")
    k(f"v_add_u32 {v(vRd)}, {STG}, {v(t+1)}")
    for i in range(1, 4): k(f"v_xor_b32 {v(vRd+i)}, {(i>>1)*128 + (i&1)*32}, {v(vRd)}")
    k.ext(k.gl_check(vPa, "s10", vFl, s(sTAG), 1, tag))
    if not opt("tsp", 0): k.ts(8)
    for i in range(8):
        k(f"buffer_load_dwordx4 {v(TD+4*i,4)}, {v(vL16)}, {s(sWS,4)}, {s(12 + (i>>2))} offen offset:{(i&3)*1024} sc1", tag=f"s{i}")
    for i in range(8):
        if i: k(f"v_xor_b32 {v(t+1+(i&1))}, {16*i}, {v(t)}")
        k.wait(v=f"s{i}")
        k(f"ds_write_b128 {v(t+1+(i&1) if i else t)}, {v(TD+4*i,4)} offset:{i*1024}")
    k(f"s_lshl2_add_u32 s15, s9, {hex(FI256_G)}")
    k(f"v_mov_b32 {v(t+3)}, 0")
    k("s_waitcnt lgkmcnt(0)")
    k(f"ds_write_b32 {v(vFw)}, {v(vOne)} offset:{cS}")
    k.lds_wait(cS, 1)
    for z in range(16):
        k(f"ds_read_b128 {v(TD+4*z,4)}, {v(vRd + (z&3))} offset:{(z>>2)*256}", tag=f"r{z}")
        if z == 7:
            k(f"s_lshl_b32 s3, {s(sS0F)}, 7")
            k(f"s_add_u32 s3, s3, {hex(GATE_G)}")
            k(f"v_lshlrev_b32 {v(vG)}, 2, {v(vC)}")
            k(f"buffer_load_dword {v(vG)}, {v(vG)}, {s(sWS,4)}, s3 offen sc1", tag="g")
    if not opt("tsp", 0): k.ts(9)
    vP2 = 13
    for z in range(16):
        k.wait(l=f"r{z}")
        if z == 8:
            k.wait(l="r15")
            k(f"ds_write_b32 {v(vFw)}, {v(vOne)} offset:{cR}")
            p, tag256 = k.gl_probe(t + 3, "s15", vP2)
            k.ext(p)
        k.mfma(VR, TD + 4*z, GC + 6*z + 2, VR if z else None)
        k.mfma(VI, TD + 4*z, GC + 6*z, VI if z else None)
    k(f"s_lshl_b32 s3, {s(sF)}, 12")
    k(f"s_add_u32 s3, s3, {STG}")
    k(f"v_add_u32 {v(t)}, s3, {v(vL16)}")
    k(f"s_xor_b32 s3, {s(sF)}, 1")
    k(f"s_lshl_b32 s3, s3, 12")
    k(f"s_add_u32 s3, s3, {STG}")
    k(f"v_add_u32 {v(t+1)}, s3, {v(vL16)}")
    k(f"v_lshlrev_b32 {v(t+2)}, 4, {v(vH)}")
    k(f"s_add_u32 s11, s11, 0x8000")
    k(f"s_lshl4_add_u32 s3, {s(sMT)}, {s(sNT)}")
    k(f"s_lshl4_add_u32 s16, s3, {hex(FP_G)}")
    k(f"s_lshr_b32 s17, {s(sF)}, 1")
    k(f"s_lshl1_add_u32 s18, {s(sPAR)}, s17")
    k(f"s_lshl4_add_u32 s3, s3, s18")
    k(f"s_lshl_b32 s3, s3, 11")
    k(f"s_add_u32 s18, s3, {hex(P_G)}")
    p, tagr = k.lds_probe(cR)
    k.ext(p)
    for a in range(4):
        for j in range(2):
            k(f"v_cvt_pk_bf16_f32 {v(TD+4*a+j)}, {v(VR+4*a+2*j)}, {v(VR+4*a+2*j+1)}")
            k(f"v_cvt_pk_bf16_f32 {v(TD+4*a+2+j)}, {v(VI+4*a+2*j)}, {v(VI+4*a+2*j+1)}")
    for a in range(4): k.mfma(AO, TD + 4*a, EP + 4*a, AO if a else None)
    k.ext(k.gl_check(t + 3, "s15", vP2, s(sTAG), 1, tag256))
    for a in range(4):
        k(f"buffer_load_dwordx4 {v(TD+16+4*a,4)}, {v(t+2)}, {s(sWS,4)}, s11 offen offset:{32*a} sc1", tag=f"q{a}")
    k(f"v_and_b32 {v(vPa)}, 12, {v(vPa)}")
    p, tagp = k.gl_probe(vPa, "s16", vP2)
    k.ext(p)
    k.ext(k.lds_check(cR, 1, tagr))
    for a in range(4): k(f"ds_write_b128 {v(t)}, {v(AO+4*a,4)} offset:{a*1024}")
    k("s_waitcnt lgkmcnt(0)")
    k(f"ds_write_b32 {v(vFw)}, {v(vOne)} offset:{cA}")
    for a in range(4):
        k.wait(v=f"q{a}")
        k.mfma(VR, TD + 16 + 4*a, EP + 4*a, VR if a else None)
    k(f"v_sub_f32 {v(t+4)}, 1.0, {v(vG)}")
    k(f"v_cvt_pk_bf16_f32 {v(t+4)}, {v(t+4)}, {v(t+4)}")
    k(f"v_and_b32 {v(t+5)}, 0xffff0000, {v(t+4)}")
    k(f"v_lshrrev_b32 {v(t+4)}, 16, {v(t+4)}")
    k(f"v_mul_f32 {v(t+6)}, {flit(2.0**-19)}, {v(vG)}")
    k(f"s_lshl_b32 s19, {s(sPAR)}, 31")
    k(f"s_or_b32 s19, s19, 0x3f800000")
    k.lds_wait(cA, 1)
    for a in range(4): k(f"ds_read_b128 {v(VI+4*a,4)}, {v(t+1)} offset:{a*1024}", tag=f"a{a}")
    k(f"v_mul_f32 {v(t+7)}, 0.5, {v(VR)}")
    k(f"v_lshl_add_u32 {v(t+2)}, {v(vC)}, 16, {v(t+2)}")
    k(f"s_lshl1_add_u32 s3, {s(sS0F)}, {s(sPAR)}")
    k(f"s_lshl2_add_u32 s3, s3, {s(sCB)}")
    k(f"s_lshl1_add_u32 s3, s3, s17")
    k(f"s_lshl_b32 s17, s3, 6")
    for a in range(4):
        k.wait(l=f"a{a}")
        for e in range(4):
            i = 4*a + e
            k(f"v_fma_f32 {v(AO+i)}, s19, {v(AO+i)}, {v(VI+i)}")
        for e in range(4):
            i = 4*a + e
            k(f"v_{'sub' if e & 1 else 'add'}_f32 {v(AO+i)}, {v(AO+i)}, {v(t+7)}")
        for e in range(4):
            i = 4*a + e
            k(f"v_mul_f32 {v(AO+i)}, {v(t+6)}, {v(AO+i)}")
    if not opt("tsp", 0): k.ts(10)
    k.ext(k.gl_check(vPa, "s16", vP2, s(sTAG), 1, tagp))
    k.ts(11)
    for src in range(4):
        for g in range(2):
            k(f"buffer_load_dwordx4 {v(TD+8*src+4*g,4)}, {v(vL16)}, {s(sWS,4)}, s18 offen offset:{g*1024} sc1", tag=f"p{src}_{g}")
        if src < 3: k(f"s_add_u32 s18, s18, 0x2000")
    for src in range(4):
        for g in range(2):
            k.wait(v=f"p{src}_{g}")
            for j in range(4):
                for hl in range(2):
                    i = 8*g + 2*j + hl
                    k(f"v_dot2_f32_bf16 {v(AO+i)}, {v(TD+8*src+4*g+j)}, {v(t+4+hl)}, {v(AO+i)}")
    for g in range(2):
        for j in range(4): k(f"v_cvt_pk_bf16_f32 {v(OT+4*g+j)}, {v(AO+8*g+2*j)}, {v(AO+8*g+2*j+1)}")
        for j in range(2): k(f"v_permlane32_swap_b32 {v(OT+4*g+j)}, {v(OT+4*g+2+j)}")
        k(f"buffer_store_dwordx4 {v(OT+4*g,4)}, {v(t+2)}, {s(sOUT,4)}, s17 offen offset:{32*g}")
    k(f"s_or_b32 s3, s2, {s(sF)}")
    k(f"s_cmp_lg_u32 s3, 0")
    k("s_cbranch_scc1 L_fin")
    k(f"v_mov_b32 {v(t)}, {s(sTAG)}", nc=True)
    k(f"buffer_store_dword {v(t)}, off, {s(sWS,4)}, 0 sc1", nc=True)
    k.label("L_fin")
    k.tsend()
    k("s_endpgm")
    k.flush_slow()
    k.label("L_end")
    k("s_endpgm")

def kd(name, vg=256):
    return f""".p2align 6
.amdhsa_kernel {name}
  .amdhsa_next_free_vgpr {vg}
  .amdhsa_next_free_sgpr 102
  .amdhsa_accum_offset {vg}
  .amdhsa_group_segment_fixed_size 0
  .amdhsa_kernarg_size 80
  .amdhsa_user_sgpr_count 2
  .amdhsa_user_sgpr_kernarg_segment_ptr 1
  .amdhsa_system_sgpr_workgroup_id_x 1
.end_amdhsa_kernel"""

def main(out):
    k = K()
    prologue(k); g_wave(k); f_common(k); f01(k); f23(k); p3(k)
    lines = []
    for l in k.L: lines += l.split("\n")
    rep = []
    body = pad(resolve(lines), rep)
    body = [l.split(";")[0].rstrip() for l in body]
    hdr = ["; gated mix of GFNet spectral filter and SiLU FFN: one persistent kernel (generated by gen2.py)",
           "; @launch grid=(256,1,1) block=(512,1,1) lds=163840",
           '.amdgcn_target "amdgcn-amd-amdhsa--gfx950"', ".text"]
    tail = ['.section .rodata,"a"', kd(NAME + "_kernel")]
    open(out, "w").write("\n".join(hdr + body + tail) + "\n")
    print("lines", len(body), "pads:", len(rep), sum(r for r, _ in rep))
    for r in rep: print("  ", r)

if __name__ == "__main__":
    main(sys.argv[1] if len(sys.argv) > 1 else f"cdna_kernels/{NAME}.s")
```
